```python
import torch

def _softmax(x, axis=-1):
    return torch.softmax(x, dim=axis)
def _gelu(x):
    return torch.nn.functional.gelu(x, approximate="tanh")
def _silu(x):
    return torch.nn.functional.silu(x)
def _sigmoid(x):
    return torch.sigmoid(x)
def _layernorm(x, axis=-1, eps=1e-5):
    m = x.mean(dim=axis, keepdim=True)
    v = x.var(dim=axis, keepdim=True, unbiased=False)
    return (x - m) / torch.sqrt(v + eps)
def _scatter_add(tgt, idx, src, axis=0):
    return tgt.clone().index_add_(axis, idx, src)
def _segment_sum(src, seg, n):
    out = torch.zeros((n,) + src.shape[1:], dtype=src.dtype)
    return out.index_add_(0, seg, src)
def _pad(x, pw):
    flat = tuple(v for pair in reversed(pw) for v in pair)
    return torch.nn.functional.pad(x, flat)

kernel_name = 'interleave_layers__sliding_local_dilated__glu_gated_swiglu__prompt'

def setup_inputs():

    _w = (lambda a: (lambda t: t.to(torch.bfloat16) if t.is_floating_point() else t)(torch.as_tensor(a)))
    def _A_setup():
        B, S, D = 1, 2048, 448
        return {
            "x": _w((lambda *s: torch.randn(*s, dtype=torch.bfloat16) * 0.05)(B, S, D)),
            "wqkv": _w((lambda *s: torch.randn(*s, dtype=torch.bfloat16) * 0.05)(D, 3 * D)),
            "wo": _w((lambda *s: torch.randn(*s, dtype=torch.bfloat16) * 0.05)(D, D)),
        }
    _A_in = _A_setup()

    def _B_setup():
        B, S, D, F = 1, 2048, 448, 1792
        return {
            "x": _w((lambda *s: torch.randn(*s, dtype=torch.bfloat16) * 0.05)(B, S, D)),
            "w1": _w((lambda *s: torch.randn(*s, dtype=torch.bfloat16) * 0.8)(D, F) * (2.0 / D) ** 0.5),
            "w3": _w((lambda *s: torch.randn(*s, dtype=torch.bfloat16) * 0.8)(D, F) * (2.0 / D) ** 0.5),
            "w2": _w((lambda *s: torch.randn(*s, dtype=torch.bfloat16) * 0.8)(F, D) * (2.0 / F) ** 0.5),
        }
    _B_in = _B_setup()

    return {
        "A_x": _A_in["x"],
        "A_wqkv": _A_in["wqkv"],
        "A_wo": _A_in["wo"],
        "B_x": _B_in["x"],
        "B_w1": _B_in["w1"],
        "B_w3": _B_in["w3"],
        "B_w2": _B_in["w2"],
    }

def reference(A_x, A_wqkv, A_wo, B_x, B_w1, B_w3, B_w2):
    def _A_ref(x, wqkv, wo):
        B, S, D = x.shape
        H = 16; Dh = D // H
        W, dil = 8, 2
        qkv = (lambda x, *d: x.permute(*d))((x @ wqkv).reshape(B, S, 3, H, Dh), 2, 0, 3, 1, 4)
        q, k, v = qkv[0], qkv[1], qkv[2]
        scale = Dh ** -0.5
        pos = torch.arange(S)
        off = torch.arange(W) * dil
        idx = pos[:, None] - off[None, :]
        mask = idx >= 0
        idx_c = torch.where(mask, idx, 0).reshape(-1)
        kg = k[:, :, idx_c, :].reshape(B, H, S, W, Dh)
        vg = v[:, :, idx_c, :].reshape(B, H, S, W, Dh)
        logits = torch.einsum("bhsd,bhswd->bhsw", q, kg) * scale
        logits = torch.where(mask[None, None, :, :], logits, -1e9)
        attn = _softmax(logits, axis=-1)
        o = torch.einsum("bhsw,bhswd->bhsd", attn, vg)
        return (lambda x, *d: x.permute(*d))(o, 0, 2, 1, 3).reshape(B, S, D) @ wo

    def _B_ref(x, w1, w3, w2):
        gate = torch.einsum("bsd,df->bsf", x, w1)
        up = torch.einsum("bsd,df->bsf", x, w3)
        h = _silu(gate) * up
        out = torch.einsum("bsf,fd->bsd", h, w2)
        return out

    x = A_x
    x = x + _A_ref(_layernorm(x, axis=-1), A_wqkv, A_wo)
    x = x + _B_ref(_layernorm(x, axis=-1), B_w1, B_w3, B_w2)
    x = x + _A_ref(_layernorm(x, axis=-1), A_wqkv, A_wo)
    x = x + _B_ref(_layernorm(x, axis=-1), B_w1, B_w3, B_w2)
    return x
```

```python
import re

TRANS = ("v_exp_f32", "v_log_f32", "v_rcp_f32", "v_rsq_f32", "v_sqrt_f32", "v_sin_f32", "v_cos_f32")

def regs_of(tok):
    t = tok.strip()
    t = t.lstrip("-").strip("|")
    m = re.fullmatch(r"([vas])(\d+)", t)
    if m: return [(m.group(1), int(m.group(2)))]
    m = re.fullmatch(r"([vas])\[(\d+):(\d+)\]", t)
    if m: return [(m.group(1), i) for i in range(int(m.group(2)), int(m.group(3)) + 1)]
    if t == "vcc": return [("s", 106), ("s", 107)]
    if t == "exec": return [("s", 126), ("s", 127)]
    if t == "m0": return [("s", 124)]
    return []

class Ins:
    __slots__ = ("text", "op", "kind", "defs", "uses", "tok", "cnt", "waits", "maybe", "label", "target", "cost",
                 "srcc", "passes", "storedata", "known_done")
    VM_COST = 1
    def __init__(self, text):
        self.text = text; self.tok = None; self.cnt = None; self.waits = None; self.maybe = False
        self.label = None; self.target = None; self.srcc = []; self.passes = 0; self.storedata = []
        self.known_done = None
        self.parse()
    def parse(self):
        t = self.text.strip()
        self.defs = []; self.uses = []; self.cost = 1; self.kind = "other"
        if t.endswith(":"):
            self.op = "label"; self.kind = "label"; self.label = t[:-1]; self.cost = 0; return
        if t.startswith(".") or t.startswith(";") or t == "":
            self.op = "dir"; self.kind = "dir"; self.cost = 0; return
        parts = t.split(None, 1)
        op = parts[0]; self.op = op
        rest = parts[1] if len(parts) > 1 else ""
        ops = [o.strip() for o in re.split(r",(?![^\[]*\])", rest)] if rest else []
        if ops:
            ops[-1] = ops[-1].split()[0] if ops[-1].split() else ""
        R = [regs_of(o) for o in ops]
        base = re.sub(r"_e32$|_e64$|_dpp$|_sdwa$", "", op)
        if op.startswith("v_mfma"):
            self.kind = "mfma"; self.cost = 2
            self.defs = R[0]; self.uses = R[1] + R[2] + R[3]; self.srcc = R[3]
            self.passes = 8 if "32x32" in op else 4
        elif op.startswith("v_"):
            self.kind = "valu"
            if base in TRANS: self.kind = "trans"; self.cost = 2
            if base.startswith("v_permlane"):
                self.kind = "perm"; self.cost = 2
                self.defs = R[0] + R[1]; self.uses = R[0] + R[1]
            elif base.startswith("v_cmp"):
                self.defs = R[0]; self.uses = sum(R[1:], [])
            elif base == "v_writelane_b32":
                self.defs = []; self.uses = sum(R[1:], [])
            elif base in ("v_readfirstlane_b32", "v_readlane_b32"):
                self.kind = "rdlane"; self.defs = R[0]; self.uses = sum(R[1:], [])
            else:
                self.defs = R[0]; self.uses = sum(R[1:], [])
                if base in ("v_fmac_f32", "v_dot2c_f32_bf16"): self.uses += R[0]
                if base == "v_cndmask_b32" and len(ops) == 3: self.uses += regs_of("vcc")
                if base.startswith("v_dot2"): self.kind = "dot"
                if "dpp" in op or "row_" in t or "quad_perm" in t:
                    self.kind = "dpp"; self.uses += R[0]
        elif op.startswith("ds_"):
            self.kind = "ds"; self.cnt = "lg"
            if op.startswith("ds_read") or op.startswith("ds_bpermute") or op.startswith("ds_swizzle"):
                self.defs = R[0]; self.uses = sum(R[1:], [])
            else:
                self.uses = sum(R, [])
        elif op.startswith("buffer_") or op.startswith("global_"):
            self.kind = "vmem"; self.cnt = "vm"; self.cost = Ins.VM_COST
            words = t.replace(",", " ").split()
            if op in ("buffer_wbl2", "buffer_inv"):
                pass
            elif "lds" in words[1:] or op.startswith("global_load_lds"):
                self.kind = "dma"; self.uses = sum(R, []) + regs_of("m0")
            elif "load" in op:
                self.defs = R[0]; self.uses = sum(R[1:], [])
            else:
                self.uses = sum(R, [])
                if op.endswith("x4") or op.endswith("x3"):
                    self.storedata = R[0] if op.startswith("buffer_") else R[1]
        elif op.startswith("s_"):
            self.kind = "salu"
            if op == "s_nop":
                self.kind = "nop"; self.cost = int(ops[0], 0) + 1
            elif op in ("s_waitcnt", "s_barrier", "s_endpgm", "s_sleep", "s_setprio"):
                self.kind = "sopp"
            elif op.startswith("s_cbranch") or op == "s_branch":
                self.kind = "branch"; self.target = ops[0]
            elif op.startswith("s_cmp") or op.startswith("s_bitcmp"):
                self.uses = sum(R, [])
            elif op.startswith("s_load") or op == "s_memtime" or op == "s_memrealtime":
                self.kind = "smem"; self.cnt = "sm"; self.defs = R[0]; self.uses = sum(R[1:], [])
            else:
                self.defs = R[0]; self.uses = sum(R[1:], [])
                if "saveexec" in op: self.defs += regs_of("exec"); self.uses += regs_of("exec")

VALU_KINDS = ("valu", "trans", "perm", "rdlane", "dot", "dpp")

def required(E, X):
    need = 0
    ed = set(E.defs); xu = set(X.uses); xd = set(X.defs)
    if E.kind in VALU_KINDS:
        vd = {r for r in ed if r[0] in "va"}; sd = {r for r in ed if r[0] == "s"}
        if vd & xu:
            if X.kind == "mfma": need = max(need, 2)
            if X.kind in ("perm", "dpp"): need = max(need, 2)
            if X.kind == "rdlane": need = max(need, 1)
            if E.kind == "trans" and X.kind != "trans": need = max(need, 1)
        if E.kind == "dot" and (vd & (xu | xd)):
            same = X.kind == "dot" and X.op == E.op
            if same:
                srcab = set(X.uses[:2]) if len(X.uses) >= 2 else set()
                if vd & srcab: need = max(need, 3)
            else:
                need = max(need, 3)
        if sd & xu:
            if X.kind in VALU_KINDS: need = max(need, 4 if X.kind == "rdlane" else 2)
            if X.kind in ("vmem", "dma"): need = max(need, 5)
    if E.kind == "mfma":
        big = E.passes == 8
        if X.kind == "mfma":
            c = set(X.srcc); ab = xu - c if not (set(X.uses[:len(X.uses) - len(X.srcc)]) & c) else set(X.uses[:len(X.uses) - len(X.srcc)])
            if ed & ab: need = max(need, 12 if big else 8)
            if ed & c:
                if not (X.srcc == E.defs and X.passes == E.passes): need = max(need, 10 if big else 6)
            elif (ed & xd) and X.passes != E.passes: need = max(need, 12)
        elif X.kind in VALU_KINDS or X.kind in ("vmem", "dma", "ds"):
            if ed & (xu | xd): need = max(need, 12 if big else 8)
            if X.kind in VALU_KINDS and (set(E.srcc) & xd): need = max(need, 7 if big else 3)
    if E.kind == "salu" and ("s", 124) in ed and X.kind == "dma": need = max(need, 1)
    if E.storedata and (set(E.storedata) & xd):
        need = max(need, 2 if X.kind in VALU_KINDS else 1)
    return need

class Prog:
    _tok = [0]
    def __init__(self):
        self.ins = []
        self.maybe = False
    def e(self, text):
        out = None
        for line in text.split("\n"):
            line = line.strip()
            if not line: continue
            i = Ins(line)
            i.maybe = self.maybe
            if i.cnt:
                Prog._tok[0] += 1; i.tok = Prog._tok[0]
            self.ins.append(i); out = i
        return out.tok if out is not None else None
    def wait(self, *toks):
        flat = []
        def rec(x):
            if isinstance(x, (list, tuple)):
                for y in x: rec(y)
            elif x is not None: flat.append(x)
        rec(toks)
        i = Ins("s_waitcnt auto"); i.waits = flat; i.maybe = self.maybe
        self.ins.append(i)
    def waitall(self, vm=True, lg=True):
        s = " ".join(x for x, f in (("vmcnt(0)", vm), ("lgkmcnt(0)", lg)) if f)
        i = Ins("s_waitcnt " + s); i.known_done = (vm, lg); i.maybe = self.maybe
        self.ins.append(i)
    def add(self, other):
        self.ins.extend(other.ins if isinstance(other, Prog) else other)
    def cost(self):
        return sum(i.cost for i in self.ins)

FORCED = [0]
def interleave(bundles, side, cap, start=0, bg=None, gap=0, bgstart=0, maxn=999):
    out = []; side = list(side); k = 0; t = 0; tnext = 0
    for bi, b in enumerate(bundles):
        if bg:
            need = {t_ for i in b if i.waits for t_ in i.waits}
            while need and any(x.tok in need for it in bg for x in it):
                out.extend(bg.pop(0)); FORCED[0] += 1
        out.extend(b)
        nm = sum(1 for i in b if i.kind == "mfma")
        dur = sum(i.passes * 4 for i in b if i.kind == "mfma")
        used = sum(i.cost for i in b if i.kind != "mfma")
        room = cap * nm - used
        t += dur
        if bg and bi >= bgstart and t >= tnext and maxn > 0:
            maxn -= 1
            it = bg.pop(0); out.extend(it); room -= sum(i.cost for i in it); tnext = t + gap
        if bi >= start:
            while k < len(side) and side[k].cost <= room:
                out.append(side[k]); room -= side[k].cost; k += 1
    return out, side[k:]

def sprinkle(ins, bg, gap, maxn=99):
    out = []; t = 0; tnext = 0; n = 0
    for i in ins:
        if bg and n < maxn and t >= tnext and not i.maybe and i.kind not in ("label", "branch") and not (out and (out[-1].op.startswith("s_cmp") or out[-1].maybe or out[-1].op in ("s_add_u32", "s_sub_u32") and i.op.startswith("s_c"))):
            it = bg.pop(0); out.extend(it); tnext = t + gap; n += 1
        out.append(i); t += 4 * max(i.cost, 0)
    return out

def resolve_waits(ins):
    vm = []; lg = []
    done = set()
    out = []
    kind_of = {i.tok: i.cnt for i in ins if i.tok}
    for i in ins:
        if i.waits is not None:
            nv = nl = None
            def need(lst, toks):
                idx = [k for k, (t, mb) in enumerate(lst) if t in toks]
                if not idx: return None
                last = max(idx)
                return last, sum(1 for (t, mb) in lst[last + 1:] if (not mb) or (i.maybe and mb == i.maybe))
            toks = set(i.waits) - done
            for t in toks:
                assert t in kind_of, "wait on unknown token"
            issued = {t for t, _ in vm} | {t for t, _ in lg}
            assert toks <= issued, "wait on op not yet issued: %s" % (sorted(toks - issued),)
            a = need(vm, toks); b = need(lg, toks)
            parts = []
            if a is not None:
                n = min(a[1], 63); parts.append("vmcnt(%d)" % n)
                if not i.maybe:
                    done |= {t for t, _ in vm[:a[0] + 1]}; vm = vm[a[0] + 1:]
            if b is not None:
                n = min(b[1], 15)
                if any(kind_of[t] == "sm" for t, _ in lg): n = 0
                parts.append("lgkmcnt(%d)" % n)
                if not i.maybe:
                    cut = len(lg) if n == 0 and any(kind_of[t] == "sm" for t, _ in lg) else b[0] + 1
                    done |= {t for t, _ in lg[:cut]}; lg = lg[cut:]
            if parts:
                j = Ins("s_waitcnt " + " ".join(parts)); j.maybe = i.maybe; out.append(j)
            continue
        if i.known_done is not None and not i.maybe:
            if i.known_done[0]: done |= {t for t, _ in vm}; vm = []
            if i.known_done[1]: done |= {t for t, _ in lg}; lg = []
        if i.cnt == "vm": vm.append((i.tok, i.maybe))
        elif i.cnt in ("lg", "sm"): lg.append((i.tok, i.maybe))
        out.append(i)
    return out

def pad_hazards(ins, window=24):
    out = []; hist = []; pos = 0
    snaps = {}
    nins = 0
    for X in ins:
        if X.kind == "label":
            for (bp, h) in snaps.get(X.label, []):
                for (pe, E) in h:
                    hist.append((pos - (bp - pe), E))
            out.append(X); continue
        if X.kind == "dir":
            out.append(X); continue
        need = 0
        for (pe, E) in hist:
            d = pos - pe - 1
            r = required(E, X)
            if r > d: need = max(need, r - d)
        while need > 0:
            n = min(need, 16)
            out.append(Ins("s_nop %d" % (n - 1))); pos += n; need -= n; nins += 1
        out.append(X)
        st = X.cost if X.kind == "nop" else 1
        pos += st
        hist.append((pos - 1, X))
        hist = [(p, E) for (p, E) in hist if pos - p <= window]
        if X.kind == "branch":
            snaps.setdefault(X.target, []).append((pos, list(hist)))
    return out, nins

def finalize(prog):
    ins = resolve_waits(prog.ins)
    ins, n = pad_hazards(ins)
    return ins, n
```

```python
import sys, math, struct
from asmlib import *

NAME = "interleave_layers__sliding_local_dilated__glu_gated_swiglu__prompt"
OPT = dict(stop=99, stamps=0, forceslow=0, pretouch=1, p1_gap1=72, at_n1=6, p1_early1=6, p3_gap1=110, p3_gap0=64, p1_early0=14, at_n0=4, p4_gap=100, g1_bgs0=4, g1_bgs1=24, p3_xa=14)
for a in sys.argv[2:]:
    k_, v_ = a.split("="); OPT[k_] = int(v_, 0)

def f2u(x): return struct.unpack("<I", struct.pack("<f", x))[0]

OFF_EPOCH = 0; OFF_EG = 4096; OFF_HELLO = 0x2000; OFF_FLAG = 0x10000; OFF_HFLAG = 0x48000
OFF_WF1 = 0x50000; OFF_WF2 = 0x58000; OFF_STAMP = 0x60000
OFF_PWQ = 0x100000; OFF_PWO = 0x250000; OFF_PW13 = 0x2C0000; OFF_PW2 = 0x5D0000
OFF_CQ = 0x760000; OFF_C13 = 0x780000
ALIAS = OPT.get('alias', 1)
OFF_O = [0x800000, 0xC00000 if ALIAS else 0xA00000]; OFF_X1 = [0xC00000, 0x800000 if ALIAS else 0xE00000]; OFF_X2 = 0x800000 if ALIAS else 0x1000000
OFF_HALO = 0x1200000; OFF_H = [0x1400000, 0x1400000 if ALIAS else 0x1C00000]; WS_USED = 0x2400000
XST = 114688
HST = 14336
L_PWQ = 0; L_PWO = 86016; L_X = 151552; L_TAB = 159744
L_CQ = L_TAB; L_C13 = L_TAB + 512; L_MEAN = L_TAB + 1536; L_RSTD = L_TAB + 2176; L_HSP = L_TAB + 2816
L_TP = [[28672, 57344, 0, 86016, 114688, 28672, 57344], [0, 28672, 57344, 86016, 114688, 0, 28672]]
L_HP = 0; L_RED = 110592
L_ROLE = 49152; L_RES = L_X; L_R4 = L_ROLE + 16384; L_HXP = [L_PWO, L_PWO + 49152]
def L_WQ(s): return 114688 + s * 6144 if s < 6 else (s - 6) * 6144
LDS_BYTES = 163840
sWS = "s[24:27]"; sX = "s[28:31]"; sOUT = "s[32:35]"; sRAW = "s[36:39]"; sRAW2 = "s[40:43]"
sC, sM, sW, sCB, sTH, sE, sEn, sEg, sFast, sIdle = ["s%d" % i for i in range(44, 54)]
sT = ["s%d" % i for i in range(54, 60)]
sCl17, sCl19, sBud, sXcc = "s60", "s61", "s62", "s63"
M_OWN = ["s[%d:%d]" % (64 + 2 * r, 65 + 2 * r) for r in range(4)]
M_PRV = ["s[%d:%d]" % (72 + 2 * r, 73 + 2 * r) for r in range(4)]
M_PR0 = ["s[%d:%d]" % (80 + 2 * r, 81 + 2 * r) for r in range(4)]
sPWQ, sPWO, sPW13, sPW2 = "s88", "s89", "s90", "s91"
sD0, sD1, sD2 = "s92", "s93", "s94"
sW7k, sW4k, sQs, sPWQ7, sQm, sKey, sPW137, sBG, sB2 = ["s%d" % i for i in range(4, 13)]
sWQr, sW3r, sW1r, sW2r, sWOr = "s[36:39]", "s[40:43]", "s[88:91]", "s[12:15]", "s[16:19]"
sRB = "s3"; sM3 = "s[20:21]"; sPoll = sFast; sF0, sF1 = "s22", "s23"
sN = ["s%d" % i for i in range(36, 44)]
sA0, sA1 = "s95", "s96"
sStamp = "s[98:99]"; sStN = "s97"
vLane, vL0, vL64, vL128, vNinf, vL15, vG = "v1", "v2", "v3", "v4", "v5", "v6", "v7"
RES = 8
vPoll, vPo, vTag, vWo = "v16", "v17", "v18", "v19"
vOnes = 20
vJunk = "v16"
vStat = "v25"
vT = ["v%d" % i for i in range(26, 32)]

def V(n, cnt=1): return "v%d" % n if cnt == 1 else "v[%d:%d]" % (n, n + cnt - 1)
def A(n, cnt=1): return "a%d" % n if cnt == 1 else "a[%d:%d]" % (n, n + cnt - 1)
def lds(addr):
    b = addr >> 16
    return (vL0, vL64, vL128)[b], addr & 0xFFFF
_lab = [0]
def L(p="L"):
    _lab[0] += 1; return "%s%d" % (p, _lab[0])

STAMPS = []
def stamp(p, name):
    if not OPT["stamps"]: return
    idx = len(STAMPS); STAMPS.append(name); assert idx < 128
    p.e("%s %s" % ("s_memrealtime" if name.startswith("R") else "s_memtime", sStamp))
    p.e("s_waitcnt lgkmcnt(0)")
    p.e("v_writelane_b32 v%d, s98, %d" % (0 if idx < 64 else 24, idx % 64))

def stamp3(p, name):
    if OPT['stamps'] >= 3: stamp(p, name)

def stamp2(p, name):
    if OPT['stamps'] >= 2: stamp(p, name)

def dma_linear(p, sbase, src_const, lds_addr, nfr, mods=""):
    per = nfr // 4; assert per * 4 == nfr
    toks = []
    p.e("s_mul_i32 %s, %s, %d" % (sD0, sW, per * 1024))
    p.e("s_add_u32 %s, %s, %s" % (sD1, sD0, sbase))
    for g0 in range(0, per, 4):
        p.e("s_add_u32 m0, %s, %d" % (sD0, lds_addr + g0 * 1024))
        p.e("s_add_u32 %s, %s, %d" % (sD2, sD1, src_const + g0 * 1024))
        for u in range(min(4, per - g0)):
            toks.append(p.e("buffer_load_dwordx4 %s, %s, %s offen offset:%d %s lds" % (vL0, sWS, sD2, u * 1024, mods)))
    return toks

def poll(p, soff, stag, voff, out=None):
    lp, ld = L("Lp"), L("Ld")
    old = p.maybe; p.maybe = old or "poll"
    p.e("%s:" % lp)
    p.e("buffer_load_dword %s, %s, %s, %s offen sc1" % (vPoll, voff, sWS, soff))
    p.e("s_waitcnt vmcnt(0)")
    p.e("v_cmp_ne_u32 vcc, %s, %s" % (stag, vPoll))
    p.e("s_cbranch_vccz %s" % (out or ld))
    p.e("s_sub_u32 %s, %s, 1" % (sBud, sBud))
    p.e("s_cbranch_scc0 %s" % lp)
    p.e("s_mov_b32 %s, 0" % sBud)
    p.e("%s:" % ld)
    p.maybe = old

def flag_store(p, soff, stag, sc1):
    p.e("v_mov_b32 %s, %s" % (vTag, stag))
    p.e("s_mov_b64 exec, 1")
    p.e("buffer_store_dword %s, off, %s, %s %s" % (vTag, sWS, soff, "sc1" if sc1 else ""))
    p.e("s_mov_b64 exec, -1")

def xgroup_reduce(p, regs, op, tmp):
    for perm in ("v_permlane16_swap_b32", "v_permlane32_swap_b32"):
        for r, t in zip(regs, tmp): p.e("v_mov_b32 %s, %s" % (t, r))
        for r, t in zip(regs, tmp): p.e("%s %s, %s" % (perm, r, t))
        for r, t in zip(regs, tmp): p.e("%s %s, %s, %s" % (op, r, r, t))

def finish_stats(p, s1, s2, nmean, rstd, tmp):
    p.e("v_mul_f32 %s, 0x%x, %s" % (nmean, f2u(-1.0 / 448), s1))
    p.e("v_mul_f32 %s, %s, %s" % (tmp, nmean, nmean))
    p.e("v_fma_f32 %s, %s, %s, -%s" % (tmp, s2, sInv448, tmp))
    p.e("v_max_f32 %s, 0, %s" % (tmp, tmp))
    p.e("v_add_f32 %s, 0x%x, %s" % (tmp, f2u(1e-5), tmp))
    p.e("v_rsq_f32 %s, %s" % (rstd, tmp))
sInv448 = "s100"

def startup(p):
    p.e("s_cmp_ge_u32 s2, 256")
    p.e("s_cbranch_scc1 Lend")
    if OPT["stamps"]:
        p.e("s_memrealtime s[64:65]"); p.e("s_memtime s[66:67]")
    k1 = p.e("s_load_dwordx16 s[4:19], s[0:1], 0")
    k2 = p.e("s_load_dwordx4 s[20:23], s[0:1], 64")
    p.e("s_getpc_b64 s[36:37]")
    p.e("Lpc:")
    p.e("s_lshr_b32 %s, s2, 3" % sT[0])
    p.e("v_and_b32 %s, 63, v0" % vLane)
    p.e("v_lshrrev_b32 v26, 6, v0")
    p.e("s_mul_i32 %s, %s, CODE_NL" % (sT[1], sT[0]))
    p.e("v_min_u32 v27, CODE_NL-1, %s" % vLane)
    p.e("v_add_u32 v27, %s, v27" % sT[1])
    p.e("v_lshlrev_b32 v27, 7, v27")
    p.e("v_min_u32 v27, Lend-Lpc-4, v27")
    p.e("v_readfirstlane_b32 %s, v26" % sW)
    p.e("global_load_dword %s, v27, s[36:37]" % vJunk)
    p.e("s_and_b32 %s, s2, 7" % sT[1])
    p.e("s_lshr_b32 %s, %s, 4" % (sC, sT[0]))
    p.e("s_lshl1_add_u32 %s, %s, %s" % (sC, sT[1], sC))
    p.e("s_and_b32 %s, %s, 15" % (sM, sT[0]))
    p.e("s_cmp_ge_u32 %s, 7" % sM)
    p.e("s_cselect_b32 %s, 1, 0" % sTH)
    p.e("s_cselect_b32 %s, 7, 0" % sT[1])
    p.e("s_sub_u32 %s, %s, %s" % (sCB, sM, sT[1]))
    p.e("s_cmp_ge_u32 %s, 14" % sM)
    p.e("s_cselect_b32 %s, 1, 0" % sIdle)
    p.e("s_cselect_b32 %s, 7, 0" % sT[1])
    p.e("s_sub_u32 %s, %s, %s" % (sCB, sCB, sT[1]))
    p.e("v_lshlrev_b32 %s, 4, %s" % (vL0, vLane))
    p.e("v_and_b32 %s, 15, %s" % (vL15, vLane))
    p.e("v_lshrrev_b32 %s, 4, %s" % (vG, vLane))
    p.e("v_lshrrev_b32 v28, 3, %s" % vLane)
    p.e("v_and_b32 v29, 7, %s" % vLane)
    p.e("v_lshlrev_b32 v29, 4, v29")
    p.wait(k1, k2)
    if OPT["stamps"]:
        p.e("s_memtime s[68:69]"); p.e("s_waitcnt lgkmcnt(0)")
    for srd, lo, size in ((24, 22, WS_USED), (28, 4, 1835008), (32, 18, 1835008)):
        p.e("s_mov_b32 s%d, s%d" % (srd, lo)); p.e("s_mov_b32 s%d, s%d" % (srd + 1, lo + 1))
        p.e("s_mov_b32 s%d, 0x%x" % (srd + 2, size)); p.e("s_mov_b32 s%d, 0x20000" % (srd + 3))
    def srd(n, lo, size):
        p.e("s_mov_b32 s%d, s%d" % (n, lo)); p.e("s_mov_b32 s%d, s%d" % (n + 1, lo + 1))
        p.e("s_mov_b32 s%d, %d" % (n + 2, size)); p.e("s_mov_b32 s%d, 0x20000" % (n + 3))
    srd(36, 6, 1204224)
    if OPT.get("xtouch", 1):
        p.e("s_lshl2_add_u32 %s, %s, %s" % (sT[0], sM, sW)); p.e("s_lshl_b32 %s, %s, 11" % (sT[0], sT[0]))
        p.e("s_mul_i32 %s, %s, 114688" % (sT[1], sC)); p.e("s_add_u32 %s, %s, %s" % (sT[0], sT[0], sT[1]))
        p.e("s_sub_u32 %s, %s, 14336" % (sT[1], sT[0])); p.e("s_cselect_b32 %s, %s, %s" % (sT[0], sT[0], sT[1]))
        p.e("v_lshlrev_b32 v30, 7, %s" % vL15)
        p.e("s_mov_b64 exec, 0xffff")
        p.e("buffer_load_dword %s, v30, %s, %s offen" % (vJunk, sX, sT[0]))
        p.e("s_mov_b64 exec, -1")
    p.e("s_lshl_b32 %s, %s, 7" % (sT[0], sC))
    p.e("s_lshl_b32 %s, %s, 5" % (sT[1], sW))
    p.e("s_add_u32 %s, %s, %s" % (sT[1], sT[1], sT[0]))
    p.e("s_mul_i32 %s, %s, 896" % (sA0, sT[1]))
    p.e("s_mul_i32 %s, %s, 28672" % (sA1, sW))
    p.e("v_and_b32 v25, 7, %s" % vLane)
    p.e("v_xor_b32 v25, v25, v28")
    p.e("v_lshlrev_b32 v25, 4, v25")
    p.e("s_movk_i32 %s, 896" % sT[2])
    p.e("v_mad_u32_u24 v25, v28, %s, v25" % sT[2])
    xd = []
    def xdma(i):
        rb, lc = i // 7, i % 7
        if lc == 0 and rb: p.e("s_add_u32 %s, %s, 7168" % (sA0, sA0))
        p.e("s_add_u32 m0, %s, %d" % (sA1, i * 1024 - lc * 128))
        xd.append(p.e("buffer_load_dwordx4 v25, %s, %s offen offset:%d lds" % (sX, sA0, lc * 128)))
    srd(40, 14, 1605632); srd(88, 12, 1605632); srd(12, 16, 1605632); srd(16, 8, 401408)
    def wtouch(lst, p=p):
        p.e("s_lshl2_add_u32 %s, s2, %s" % (sT[0], sW))
        p.e("v_lshlrev_b32 v30, 7, %s" % vLane)
        for sr, n in lst:
            p.e("s_mul_i32 %s, %s, %d" % (sT[1], sT[0], n * 128))
            p.e("s_mov_b64 exec, 0x%x" % ((1 << n) - 1))
            p.e("buffer_load_dword %s, v30, %s, %s offen" % (vJunk, sr, sT[1]))
        p.e("s_mov_b64 exec, -1")
    low = [(sW1r, 13), (sW3r, 13), (sWOr, 4), (sW2r, 13)]
    TM = OPT.get("tmode", 3)
    if TM in (1, 3): wtouch([(sWQr, 10)])
    if TM == 2: wtouch([(sWQr, 10)] + low)
    if OPT["stamps"]:
        p.e("s_lshl_b32 %s, s2, 2" % sStN); p.e("s_add_u32 %s, %s, %s" % (sStN, sStN, sW))
        p.e("s_lshl_b32 %s, %s, 9" % (sStN, sStN)); p.e("s_add_u32 %s, %s, %d" % (sStN, sStN, OFF_STAMP))
        for nm_, sr in (("entry", "s66"), ("R0", "s64"), ("S.karg", "s68")):
            idx = len(STAMPS); STAMPS.append(nm_)
            p.e("v_writelane_b32 v0, %s, %d" % (sr, idx))
    p.e("s_lshl_b32 %s, %s, 7" % (sT[0], sC))
    p.e("s_lshl_b32 %s, %s, 7" % (sT[1], sCB))
    p.e("s_add_u32 %s, %s, %d" % (sT[1], sT[1], OFF_EG))
    p.e("s_add_u32 %s, %s, 128" % (sT[2], sT[0]))
    e1 = p.e("s_load_dword %s, s[22:23], %s" % (sE, sT[0]))
    e2 = p.e("s_load_dword %s, s[22:23], %s" % (sEn, sT[2]))
    e3 = p.e("s_load_dword %s, s[22:23], %s" % (sEg, sT[1]))
    p.e("s_lshr_b32 %s, %s, 1" % (sT[0], sW)); p.e("s_mul_i32 %s, %s, 192" % (sT[1], sT[0]))
    p.e("s_mul_i32 %s, %s, 56" % (sT[2], sM)); p.e("s_movk_i32 %s, 2688" % sT[3]); p.e("s_movk_i32 %s, 896" % sT[4])
    for u in range(3):
        r = 244 + u
        p.e("v_add_u32 v26, %s, %s" % (sT[1], vLane))
        if u: p.e("v_add_u32 v26, %d, v26" % (64 * u))
        p.e("v_mul_u32_u24 v27, 5462, v26"); p.e("v_lshrrev_b32 v27, 16, v27")
        p.e("v_mul_u32_u24 v28, 12, v27"); p.e("v_sub_u32 v26, v26, v28")
        p.e("v_lshrrev_b32 v28, 2, v27"); p.e("v_lshrrev_b32 v29, 3, v27"); p.e("v_xor_b32 v28, v28, v29")
        p.e("v_and_b32 v28, 1, v28"); p.e("v_lshlrev_b32 v28, 1, v28"); p.e("v_xor_b32 v26, v26, v28")
        p.e("v_lshrrev_b32 v28, 2, v26"); p.e("v_and_b32 v26, 3, v26")
        p.e("v_lshl_add_u32 v26, v26, 4, %s" % sT[2])
        p.e("v_mad_u32_u24 v26, v28, %s, v26" % sT[4])
        p.e("v_mad_u32_u24 v%d, v27, %s, v26" % (r, sT[3]))
        if u: p.e("v_subrev_u32 v%d, %d, v%d" % (r, 1024 * u, r))
    p.e("s_and_b32 %s, %s, 1" % (sT[1], sW))
    p.e("s_mul_i32 %s, %s, 86016" % (sQs, sT[1]))
    p.e("s_mul_i32 %s, %s, 6144" % (sQm, sT[1])); p.e("s_mul_i32 %s, %s, 3072" % (sT[0], sT[0])); p.e("s_add_u32 %s, %s, %s" % (sQm, sQm, sT[0]))
    p.e("v_add_u32 %s, 0x10000, %s" % (vL64, vL0))
    p.e("v_add_u32 %s, 0x20000, %s" % (vL128, vL0))
    p.e("v_mov_b32 %s, 0xff800000" % vNinf)
    p.e("v_mov_b32 %s, 0" % vPo)
    for i in range(4): p.e("v_mov_b32 v%d, 0x3f803f80" % (vOnes + i))
    p.e("s_mov_b32 %s, 0x%x" % (sInv448, f2u(1.0 / 448)))
    p.e("s_lshl_b32 %s, %s, 17" % (sCl17, sC))
    p.e("s_lshl_b32 %s, %s, 19" % (sCl19, sC))
    p.e("s_mov_b32 %s, 60000" % sBud)
    p.e("s_mov_b32 s20, 0"); p.e("s_mov_b32 s21, 0xffff0000")
    p.e("s_cmp_eq_u32 %s, 3" % sW); p.e("s_cselect_b32 %s, 99, %s" % (sKey, sC))
    for r in range(4):
        p.e("v_lshl_add_u32 v26, %s, 2, %d" % (vG, r))
        p.e("v_sub_u32 v27, %s, v26" % vL15)
        p.e("v_and_b32 v28, 1, v27")
        p.e("v_cmp_eq_u32 vcc, 0, v28")
        p.e("v_cmp_le_i32_e64 %s, 0, v27" % M_OWN[r])
        p.e("v_cmp_ge_i32_e64 %s, -2, v27" % M_PRV[r])
        p.e("s_and_b64 %s, %s, vcc" % (M_OWN[r], M_OWN[r]))
        p.e("s_and_b64 %s, %s, vcc" % (M_PRV[r], M_PRV[r]))
    p.e("s_or_b32 %s, %s, %s" % (sT[0], sC, sW))
    p.e("s_cmp_eq_u32 %s, 0" % sT[0])
    for r in range(4): p.e("s_cselect_b64 %s, 0, %s" % (M_PR0[r], M_PRV[r]))
    stamp(p, "S.const")
    p.wait(e1, e2, e3)
    for s in (sE, sEn, sEg):
        p.e("s_mul_i32 %s, %s, 0x9e3779b1" % (s, s)); p.e("s_add_u32 %s, %s, 0x7f4a7c15" % (s, s))
    lh = L()
    p.e("s_getreg_b32 %s, hwreg(HW_REG_XCC_ID)" % sXcc)
    p.e("s_and_b32 %s, %s, 15" % (sXcc, sXcc))
    p.e("s_andn2_b32 %s, %s, 15" % (sT[0], sE))
    p.e("s_or_b32 %s, %s, %s" % (sXcc, sXcc, sT[0]))
    p.e("s_mov_b32 %s, 2" % sFast)
    p.e("s_cmp_lg_u32 %s, 3" % sW); p.e("s_cbranch_scc1 %s" % lh)
    p.maybe = "h"
    p.e("s_lshl_b32 %s, %s, 11" % (sT[0], sC)); p.e("s_lshl_b32 %s, %s, 7" % (sT[1], sM))
    p.e("s_add_u32 %s, %s, %s" % (sT[0], sT[0], sT[1])); p.e("s_add_u32 %s, %s, %d" % (sT[0], sT[0], OFF_HELLO))
    flag_store(p, sT[0], sXcc, True)
    p.maybe = False
    p.e("%s:" % lh)
    p.e("v_and_b32 v80, 7, %s" % vLane)
    p.e("v_bfe_u32 v81, %s, 3, 1" % vLane)
    p.e("v_xor_b32 v82, %s, v80" % vG)
    p.e("v_lshlrev_b32 v82, 4, v82")
    p.e("v_lshl_add_u32 v82, v80, 7, v82")
    p.e("s_movk_i32 %s, 7168" % sT[2])
    p.e("v_mad_u32_u24 v82, v81, %s, v82" % sT[2])
    p.e("v_add_u32 v82, %s, v82" % sA1)
    p.e("v_xor_b32 v83, 64, v82")
    def dots(j):
        q = Prog()
        for i in range(56):
            reg = 128 + 56 * j + i
            q.e("v_dot2_f32_bf16 v%d, v%d, v%d, %s" % (96 + 2 * j, reg, vOnes, "0" if i == 0 else "v%d" % (96 + 2 * j)))
            q.e("v_dot2_f32_bf16 v%d, v%d, v%d, %s" % (97 + 2 * j, reg, reg, "0" if i == 0 else "v%d" % (97 + 2 * j)))
        return q.ins
    def xreads(j):
        return [p.e("ds_read_b128 %s, v%d offset:%d" % (V(128 + (j * 14 + s_) * 4, 4), 82 + (s_ & 1), j * 14336 + (s_ >> 1) * 1024)) for s_ in range(14)]
    bg = BGQ
    for i in range(28): xdma(i)
    wq = [rawq(p, 0)]
    stamp(p, "S.xiss")
    p.wait(xd[:14]); r0 = xreads(0)
    wq += [rawq_bg(bg, 1), rawq_bg(bg, 2)]
    if TM == 1:
        q = Prog(); wtouch(low, q); bg.append(Item(q.ins))
    if TM == 3:
        q = Prog(); wtouch([(sWOr, 4)], q); bg.append(Item(q.ins))
    bg.pt(p, 3)
    p.wait(r0)
    p.add(spr(dots(0), bg, OPT.get("tail_gap", 100)))
    while bg: bg.pt(p)
    p.wait(xd)
    stamp(p, "S.xin")
    xreads(1)
    p.e("v_lshrrev_b32 v28, 3, %s" % vLane)
    p.e("v_and_b32 v29, 7, %s" % vLane)
    p.e("v_lshrrev_b32 v26, 4, %s" % vLane); p.e("v_lshlrev_b32 v26, 1, v26"); p.e("v_xor_b32 v26, v26, v29")
    p.e("v_lshlrev_b32 v26, 4, v26"); p.e("s_movk_i32 %s, 896" % sT[2]); p.e("v_mad_u32_u24 %s, v28, %s, v26" % (vWo, sT[2]))
    p.e("v_lshlrev_b32 v29, 4, v29")
    p.e("v_mad_u32_u24 v127, v28, %s, v29" % sT[2])
    p.e("s_movk_i32 %s, 3584" % sT[2]); p.e("v_mad_u32_u24 v126, v28, %s, v29" % sT[2])
    p.e("s_mul_i32 %s, %s, 224" % (sRB, sM)); p.e("s_mul_i32 %s, %s, 114688" % (sT[1], sC)); p.e("s_add_u32 %s, %s, %s" % (sRB, sRB, sT[1]))
    p.e("s_add_u32 %s, %s, %s" % (sRB, sRB, sA1))
    p.e("s_lshl1_add_u32 s22, %s, %s" % (sC, sTH)); p.e("s_mul_i32 s22, s22, 57344")
    p.e("s_lshl_b32 %s, %s, 7" % (sT[1], sCB)); p.e("s_add_u32 s22, s22, %s" % sT[1])
    p.e("s_mul_i32 %s, %s, 7168" % (sT[1], sW)); p.e("s_add_u32 s22, s22, %s" % sT[1])
    p.e("s_cmp_lg_u32 %s, 0" % sIdle); p.e("s_cselect_b32 s22, 0x40000000, s22")
    p.e("s_cmp_ge_u32 %s, 14" % sC); p.e("s_cselect_b32 s22, 0x40000000, s22"); p.e("s_cselect_b32 %s, 0x40000000, %s" % (sRB, sRB))
    p.e("s_lshl_b32 s23, %s, 10" % sW)
    p.waitall(vm=False)
    p.e("s_barrier")
    for half in range(2):
        for mat, sr in enumerate((sW1r, sW3r)):
            q = Prog()
            q.e("s_add_u32 m0, s23, %d" % (L_ROLE + half * 8192 + mat * 4096 - half * 128))
            q.e("buffer_load_dwordx4 v126, %s, %s offen offset:%d lds" % (sr, sRB, half * 128))
            bg.append(Item(q.ins))
    for u in range(2):
        q = Prog()
        q.e("s_add_u32 m0, s23, %d" % (L_R4 + u * 4096))
        if u: q.e("s_add_u32 s22, s22, 28672")
        q.e("buffer_load_dwordx4 v127, %s, s22 offen lds" % sW2r)
        bg.append(Item(q.ins))
    pp_ = p; p = Prog()
    p.e("s_mul_i32 %s, %s, 86016" % (sPWQ, sM)); p.e("s_add_u32 %s, %s, %d" % (sPWQ, sPWQ, OFF_PWQ))
    p.e("s_mul_i32 %s, %s, 200704" % (sPW13, sM)); p.e("s_add_u32 %s, %s, %d" % (sPW13, sPW13, OFF_PW13))
    p.e("s_mul_i32 %s, %s, 229376" % (sPW2, sCB)); p.e("s_mul_i32 %s, %s, 57344" % (sT[0], sW))
    p.e("s_add_u32 %s, %s, %s" % (sPW2, sPW2, sT[0])); p.e("s_add_u32 %s, %s, %d" % (sPW2, sPW2, OFF_PW2))
    p.e("s_mul_i32 %s, %s, 7168" % (sW7k, sW)); p.e("s_lshl_b32 %s, %s, 12" % (sW4k, sW))
    p.e("s_add_u32 %s, %s, %s" % (sPWQ7, sPWQ, sW7k)); p.e("s_add_u32 %s, %s, %s" % (sPW137, sPW13, sW7k))
    p.e("s_mul_i32 %s, %s, 25088" % (sPWO, sW)); p.e("s_lshl_b32 %s, %s, 7" % (sT[0], sCB)); p.e("s_add_u32 %s, %s, %s" % (sPWO, sPWO, sT[0]))
    bg.append(Item(p.ins)); p = pp_
    stamp(p, "S.role2")
    return wq, dots(1)

def rawq_bg(bg, ch):
    q = Prog(); t = rawq(q, ch)
    bg.append(Item(q.ins[:3]))
    for k in (3, 4):
        it = Item([q.ins[k]]); it.cont = True; bg.append(it)
    return t

def rawq(p, ch):
    p.e("s_add_u32 m0, %s, %d" % (sQm, L_WQ(2 * ch)))
    p.e("s_add_u32 %s, %s, %d" % (sBG, sQs, ch * 172032))
    return [p.e("buffer_load_dwordx4 v%d, %s, %s offen offset:%d lds" % (244 + u, sWQr, sBG, u * 1024)) for u in range(3)]

def repack(p):
    lj, l4, l5 = L(), L(), L()
    p.maybe = "r"
    p.e("s_cmp_ge_u32 %s, 14" % sC); p.e("s_cbranch_scc1 %s" % lj)
    p.e("v_lshrrev_b32 v26, 2, %s" % vL15)
    p.e("v_and_b32 v27, 3, %s" % vLane)
    p.e("v_lshlrev_b32 v27, 3, v27")
    p.e("v_lshrrev_b32 v30, 1, %s" % vG)
    p.e("v_and_b32 v29, 1, %s" % vG)
    p.e("v_lshl_add_u32 v28, v30, 2, v26")
    p.e("v_lshl_add_u32 v28, v28, 7, v27")
    p.e("v_lshl_add_u32 v28, v29, 12, v28")
    p.e("s_lshr_b32 %s, %s, 1" % (sT[0], sW)); p.e("s_and_b32 %s, %s, 1" % (sT[1], sW)); p.e("s_lshl_b32 %s, %s, 6" % (sT[1], sT[1]))
    p.e("s_lshl_b32 %s, %s, 13" % (sT[2], sT[0])); p.e("s_add_u32 %s, %s, %s" % (sT[2], sT[2], sT[1])); p.e("s_add_u32 %s, %s, %d" % (sT[2], sT[2], L_ROLE))
    p.e("v_add_u32 v28, %s, v28" % sT[2])
    for i in range(2):
        for pp in range(2):
            f = 32 + (i * 2 + pp) * 4
            p.e("ds_read_b64_tr_b16 %s, v28 offset:%d" % (A(f, 2), pp * 1024 + i * 32))
            p.e("ds_read_b64_tr_b16 %s, v28 offset:%d" % (A(f + 2, 2), pp * 1024 + i * 32 + 2048))
    p.e("v_lshl_add_u32 v30, v30, 4, v26")
    p.e("v_lshl_add_u32 v30, v29, 2, v30")
    p.e("v_lshl_add_u32 v30, v30, 7, v27")
    p.e("s_lshl_b32 %s, %s, 12" % (sT[2], sT[0])); p.e("s_add_u32 %s, %s, %s" % (sT[2], sT[2], sT[1])); p.e("s_add_u32 %s, %s, %d" % (sT[2], sT[2], L_R4))
    p.e("v_add_u32 v30, %s, v30" % sT[2])
    for t in range(2):
        p.e("ds_read_b64_tr_b16 %s, v30 offset:%d" % (A(48 + 4 * t, 2), t * 32))
        p.e("ds_read_b64_tr_b16 %s, v30 offset:%d" % (A(50 + 4 * t, 2), t * 32 + 1024))
    p.e("s_mul_i32 %s, %s, 57344" % (sT[0], sW)); p.e("s_add_u32 %s, %s, %s" % (sT[0], sT[0], sPW13))
    p.e("s_lshl_b32 %s, %s, 11" % (sT[1], sC)); p.e("s_add_u32 %s, %s, %s" % (sT[0], sT[0], sT[1]))
    p.e("s_mul_i32 %s, %s, 14" % (sT[2], sM)); p.e("s_add_u32 %s, %s, %s" % (sT[2], sT[2], sC))
    p.e("s_mul_i32 %s, %s, 896" % (sT[2], sT[2]))
    p.e("s_lshl_b32 %s, %s, 8" % (sT[1], sW))
    p.e("s_add_u32 %s, %s, %s" % (sT[2], sT[2], sT[1])); p.e("s_add_u32 %s, %s, %d" % (sT[2], sT[2], OFF_C13))
    p.e("s_lshl1_add_u32 %s, %s, %s" % (sT[3], sC, sTH)); p.e("s_lshl_b32 %s, %s, 13" % (sT[3], sT[3]))
    p.e("s_mul_i32 %s, %s, 229376" % (sT[1], sCB)); p.e("s_add_u32 %s, %s, %s" % (sT[3], sT[3], sT[1]))
    p.e("s_lshl_b32 %s, %s, 11" % (sT[1], sW)); p.e("s_add_u32 %s, %s, %s" % (sT[3], sT[3], sT[1])); p.e("s_add_u32 %s, %s, %d" % (sT[3], sT[3], OFF_PW2))
    p.e("v_lshlrev_b32 v29, 2, %s" % vLane)
    p.e("s_waitcnt lgkmcnt(0)")
    for i in range(2):
        p.e("v_mfma_f32_32x32x16_bf16 %s, %s, %s, 0" % (A(64 + 16 * i, 16), V(vOnes, 4), A(32 + 8 * i, 4)))
        p.e("v_mfma_f32_32x32x16_bf16 %s, %s, %s, %s" % (A(64 + 16 * i, 16), V(vOnes, 4), A(36 + 8 * i, 4), A(64 + 16 * i, 16)))
    for pp in range(2): p.e("buffer_store_dwordx4 %s, %s, %s, %s offen offset:%d sc1" % (A(32 + pp * 4, 4), vL0, sWS, sT[0], pp * 1024))
    p.e("s_cmp_ge_u32 %s, 14" % sM); p.e("s_cbranch_scc1 %s" % l4)
    for t in range(2): p.e("buffer_store_dwordx4 %s, %s, %s, %s offen offset:%d sc1" % (A(48 + 4 * t, 4), vL0, sWS, sT[3], t * 1024))
    p.e("%s:" % l4)
    p.e("s_mov_b32 exec_hi, 0")
    p.e("buffer_store_dword a64, v29, %s, %s offen sc1" % (sWS, sT[2]))
    p.e("s_cmp_eq_u32 %s, 3" % sW); p.e("s_cbranch_scc1 %s" % l5)
    p.e("buffer_store_dword a80, v29, %s, %s offen offset:128 sc1" % (sWS, sT[2]))
    p.e("s_mov_b32 exec_hi, -1")
    p.e("s_add_u32 %s, %s, 28672" % (sT[0], sT[0]))
    for pp in range(2): p.e("buffer_store_dwordx4 %s, %s, %s, %s offen offset:%d sc1" % (A(40 + pp * 4, 4), vL0, sWS, sT[0], pp * 1024))
    p.e("%s:" % l5)
    p.e("s_mov_b32 exec_hi, -1")
    p.maybe = False
    p.e("%s:" % lj)

def publish_q(p, lo, hi, base):
    lj = L()
    p.e("s_sub_u32 %s, %s, %d" % (sT[0], sKey, lo)); p.e("s_cmp_ge_u32 %s, %d" % (sT[0], hi - lo)); p.e("s_cbranch_scc1 %s" % lj)
    p.maybe = "pq"
    p.e("s_mul_i32 %s, %s, 6144" % (sT[0], sT[0])); p.e("s_lshl_b32 %s, %s, 6" % (sT[1], sW)); p.e("s_add_u32 %s, %s, %s" % (sT[0], sT[0], sT[1]))
    p.e("v_add_u32 v26, %s, v%d" % (sT[0], base)); p.e("v_add_u32 v27, %s, v%d" % (sT[0], base + 1))
    p.e("ds_read_b64_tr_b16 a[56:57], v26"); p.e("ds_read_b64_tr_b16 a[58:59], v27 offset:800")
    p.e("ds_read_b64_tr_b16 a[60:61], v27 offset:32"); p.e("ds_read_b64_tr_b16 a[62:63], v26 offset:768")
    p.e("s_mul_i32 %s, %s, 6144" % (sT[0], sC)); p.e("s_lshl_b32 %s, %s, 11" % (sT[1], sW)); p.e("s_add_u32 %s, %s, %s" % (sT[0], sT[0], sT[1]))
    p.e("s_add_u32 %s, %s, %s" % (sT[0], sT[0], sPWQ))
    p.e("s_waitcnt lgkmcnt(0)")
    p.e("buffer_store_dwordx4 a[56:59], %s, %s, %s offen sc1" % (vL0, sWS, sT[0]))
    p.e("buffer_store_dwordx4 a[60:63], %s, %s, %s offen offset:1024 sc1" % (vL0, sWS, sT[0]))
    p.maybe = False
    p.e("%s:" % lj)

def halo_dma0(bg):
    p = Prog(); n0 = 0
    p.e("s_lshl_b32 %s, %s, 7" % ("s40", sC))
    p.e("s_sub_u32 %s, %s, 16" % ("s41", "s40")); p.e("s_mul_i32 %s, %s, 896" % ("s41", "s41"))
    halo_s0(p, "s42"); p.e("s_lshl_b32 %s, %s, 6" % ("s43", "s42")); p.e("s_add_u32 %s, %s, %s" % ("s41", "s41", "s43"))
    p.e("s_cmp_eq_u32 %s, 0" % sC); p.e("s_cselect_b32 %s, 0x40000000, %s" % ("s41", "s41"))
    p.e("s_lshl_b32 %s, %s, 10" % ("s42", "s42"))
    p.e("v_mul_u32_u24 v123, 896, %s" % vL15); p.e("v_lshl_add_u32 v123, %s, 4, v123" % vG)
    for u in range(4):
        p.e("s_add_u32 m0, %s, %d" % ("s42", L_HXP[0] + u * 1024 - u * 64))
        p.e("buffer_load_dwordx4 v123, %s, %s offen offset:%d lds" % (sX, "s41", u * 64))
    p.e("s_lshl_b32 %s, %s, 6" % ("s41", sTH)); p.e("s_add_u32 %s, %s, %s" % ("s41", "s41", "s40"))
    p.e("s_lshl_b32 %s, %s, 4" % ("s42", sW)); p.e("s_add_u32 %s, %s, %s" % ("s41", "s41", "s42"))
    p.e("s_mul_i32 %s, %s, 896" % ("s41", "s41")); p.e("s_lshl_b32 %s, %s, 7" % ("s42", sCB)); p.e("s_add_u32 %s, %s, %s" % ("s41", "s41", "s42"))
    p.e("s_lshl_b32 %s, %s, 11" % ("s43", sW))
    for rb in range(2):
        if rb: p.e("s_add_u32 %s, %s, 7168" % ("s41", "s41"))
        p.e("s_add_u32 m0, %s, %d" % ("s43", L_RES + rb * 1024))
        p.e("buffer_load_dwordx4 v25, %s, %s offen lds" % (sX, "s41"))
    cur = Item()
    for i in p.ins:
        cur.append(i)
        if i.tok: bg.append(cur); cur = Item()
    return [i.tok for i in p.ins if i.tok]

def halo_finish0(p, hd):
    HQ = 80
    halo_s0(p, sT[0]); p.e("s_lshl_b32 %s, %s, 10" % (sT[0], sT[0])); p.e("s_add_u32 %s, %s, %d" % (sT[0], sT[0], L_HXP[0]))
    p.e("v_add_u32 v26, %s, %s" % (sT[0], vL0))
    p.e("v_lshrrev_b32 v27, 1, %s" % vG)
    p.e("v_and_b32 v28, 7, %s" % vLane); p.e("v_xor_b32 v27, v27, v28")
    p.e("v_lshlrev_b32 v27, 4, v27")
    p.e("v_lshl_add_u32 v27, %s, 7, v27" % vL15)
    p.e("v_and_b32 v28, 1, %s" % vG)
    p.e("v_lshl_add_u32 v27, v28, 3, v27")
    p.e("s_lshl_b32 %s, %s, 11" % (sT[3], sW)); p.e("s_add_u32 %s, %s, %d" % (sT[3], sT[3], L_RES))
    p.e("v_add_u32 v27, %s, v27" % sT[3])
    for t in range(1, 4): p.e("v_xor_b32 v%d, %d, v27" % (27 + t, 32 * t))
    p.e("v_lshlrev_b32 %s, 11, %s" % (vStat, vG))
    p.e("v_lshl_add_u32 %s, %s, 3, %s" % (vStat, vL15, vStat))
    p.wait(hd)
    rd = [p.e("ds_read_b128 %s, v26 offset:%d" % (V(HQ + 4 * u, 4), u * 1024)) for u in range(4)]
    rd += [p.e("ds_read_b64 %s, v%d" % (V(RES + 2 * t, 2), 27 + t)) for t in range(4)]
    p.e("s_cmp_eq_u32 %s, 3" % sW); p.e("s_cselect_b64 vcc, -1, 0")
    p.wait(rd)
    for i in range(8): p.e("v_cndmask_b32_e64 v%d, v%d, 0, vcc" % (HQ + i, HQ + i))
    for i in range(16):
        p.e("v_dot2_f32_bf16 v100, v%d, v%d, %s" % (HQ + i, vOnes, "0" if i == 0 else "v100"))
        p.e("v_dot2_f32_bf16 v101, v%d, v%d, %s" % (HQ + i, HQ + i, "0" if i == 0 else "v101"))
    xgroup_reduce(p, ["v100", "v101"], "v_add_f32", ["v106", "v107"])
    p.e("s_lshl_b32 %s, %s, 7" % (sT[0], sW)); p.e("s_add_u32 %s, %s, %d" % (sT[0], sT[0], L_HSP))
    p.e("v_lshl_add_u32 v26, %s, 3, %s" % (vL15, sT[0]))
    t = p.e("ds_write_b64 v26, v[100:101]")
    return t

def sT896(p):
    p.e("s_movk_i32 %s, 896" % sT[2]); return sT[2]
def halo_s0(p, dst):
    p.e("s_lshl_b32 %s, %s, 2" % (dst, sW))
    p.e("s_min_u32 %s, %s, 10" % (dst, dst))

def pretouch_o(p, pr):
    if not OPT["pretouch"]: return
    p.e("v_and_b32 v26, 7, %s" % vLane); p.e("v_lshlrev_b32 v26, 7, v26")
    p.e("v_bfe_u32 v27, %s, 3, 1" % vLane); p.e("v_lshl_add_u32 v26, v27, 14, v26")
    p.e("s_lshl_b32 %s, %s, 15" % (sT[0], sW)); p.e("s_lshl_b32 %s, %s, 10" % (sT[1], sM))
    p.e("s_add_u32 %s, %s, %s" % (sT[0], sT[0], sT[1])); p.e("s_add_u32 %s, %s, %s" % (sT[0], sT[0], sCl17))
    p.e("s_add_u32 %s, %s, %d" % (sT[0], sT[0], OFF_O[pr]))
    p.e("s_mov_b64 exec, 0xffff")
    p.e("buffer_load_dword %s, v26, %s, %s offen sc1" % (vJunk, sWS, sT[0]))
    p.e("s_mov_b64 exec, -1")

def xtile_base(p, dst, off):
    p.e("s_lshl_b32 %s, %s, 2" % (dst, sTH)); p.e("s_add_u32 %s, %s, %s" % (dst, dst, sW))
    p.e("s_mul_i32 %s, %s, 14336" % (dst, dst))
    p.e("s_lshl_b32 %s, %s, 11" % (sT[5], sCB)); p.e("s_add_u32 %s, %s, %s" % (dst, dst, sT[5]))
    p.e("s_add_u32 %s, %s, %s" % (dst, dst, sCl17)); p.e("s_add_u32 %s, %s, %d" % (dst, dst, off))
def xstat_base(p, dst, off):
    p.e("s_lshl_b32 %s, %s, 2" % (dst, sTH)); p.e("s_add_u32 %s, %s, %s" % (dst, dst, sW))
    p.e("s_lshl_b32 %s, %s, 7" % (dst, dst))
    p.e("s_lshl_b32 %s, %s, 10" % (sT[5], sCB)); p.e("s_add_u32 %s, %s, %s" % (dst, dst, sT[5]))
    p.e("s_add_u32 %s, %s, %s" % (dst, dst, sCl17)); p.e("s_add_u32 %s, %s, %d" % (dst, dst, off + XST))

def pretouch_x(p, off):
    if not OPT["pretouch"]: return
    xtile_base(p, sT[0], off); xstat_base(p, sT[1], off)
    p.e("v_lshlrev_b32 v26, 7, %s" % vLane)
    p.e("s_mov_b64 exec, 0xffff")
    p.e("buffer_load_dword %s, v26, %s, %s offen sc1" % (vJunk, sWS, sT[0]))
    p.e("s_mov_b64 exec, 1")
    p.e("buffer_load_dword %s, v26, %s, %s offen sc1" % (vJunk, sWS, sT[1]))
    p.e("s_mov_b64 exec, -1")

def pretouch_h(p, pr):
    if not OPT["pretouch"]: return
    p.e("v_and_b32 v26, 31, %s" % vLane); p.e("v_min_u32 v26, 27, v26"); p.e("v_lshlrev_b32 v26, 7, v26")
    p.e("v_lshrrev_b32 v27, 5, %s" % vLane)
    p.e("s_mov_b32 %s, 57344" % sT[1])
    p.e("v_mad_u32_u24 v26, v27, %s, v26" % sT[1])
    h_base(p, sT[0], pr)
    p.e("buffer_load_dword %s, v26, %s, %s offen sc1" % (vJunk, sWS, sT[0]))
def h_base(p, dst, pr):
    p.e("s_mul_i32 %s, %s, 114688" % (dst, sW)); p.e("s_mul_i32 %s, %s, 3584" % (sT[5], sM))
    p.e("s_add_u32 %s, %s, %s" % (dst, dst, sT[5])); p.e("s_add_u32 %s, %s, %s" % (dst, dst, sCl19))
    p.e("s_add_u32 %s, %s, %d" % (dst, dst, OFF_H[pr]))

def pretouch_flags(p):
    if not OPT["pretouch"]: return
    p.e("v_lshlrev_b32 v26, 15, %s" % vLane)
    p.e("s_lshl_b32 %s, %s, 11" % (sT[0], sC)); p.e("s_lshl_b32 %s, %s, 7" % (sT[1], sM))
    p.e("s_add_u32 %s, %s, %s" % (sT[0], sT[0], sT[1])); p.e("s_add_u32 %s, %s, %d" % (sT[0], sT[0], OFF_FLAG))
    p.e("s_mov_b64 exec, 0x7f")
    p.e("buffer_load_dword %s, v26, %s, %s offen sc1" % (vJunk, sWS, sT[0]))
    p.e("s_mov_b64 exec, -1")

exec(open(__file__.replace("gen.py", "phases.py")).read())

def build():
    p = Prog()
    st = {}
    st['wq'], st['dots1'] = startup(p)
    seq = [("p1", 0), ("p2", 0), ("p3", 0), ("p4", 0), ("p1", 1), ("p2", 1), ("p3", 1), ("p4", 1)]
    for n, (ph, pr) in enumerate(seq):
        globals()[ph](p, pr, st)
        if n + 1 >= OPT["stop"]: break
    le, l2 = L(), L()
    p.e("Lfin:")
    p.waitall()
    stamp(p, "end"); stamp(p, "R1")
    if OPT["stamps"]:
        p.e("v_lshlrev_b32 v30, 2, %s" % vLane)
        p.e("buffer_store_dword v0, v30, %s, %s offen" % (sWS, sStN))
        p.e("buffer_store_dword v24, v30, %s, %s offen offset:256" % (sWS, sStN))
    p.e("s_cmp_lg_u32 %s, 3" % sW); p.e("s_cbranch_scc1 Lend")
    p.maybe = "end"
    p.e("s_cmp_lg_u32 %s, 0" % sM); p.e("s_cbranch_scc1 %s" % l2)
    p.e("s_lshl_b32 %s, %s, 7" % (sT[0], sC))
    flag_store(p, sT[0], sE, True)
    p.e("%s:" % l2)
    p.e("s_cmp_lg_u32 %s, 0" % sC); p.e("s_cbranch_scc1 Lend")
    p.e("s_cmp_ge_u32 %s, 7" % sM); p.e("s_cbranch_scc1 Lend")
    p.e("s_lshl_b32 %s, %s, 7" % (sT[0], sM)); p.e("s_add_u32 %s, %s, %d" % (sT[0], sT[0], OFF_EG))
    flag_store(p, sT[0], sEg, True)
    p.maybe = False
    p.e("Lend:")
    p.e("s_endpgm")
    return p

def main():
    p = build()
    ins, nn = finalize(p)
    if OPT.get('align', 1):
        import align
        print('align (promoted, still misaligned):', align.align(ins, '.set CODE_NL, 14'))
    n_i = sum(1 for i in ins if i.kind not in ("label", "dir"))
    est = n_i * 7
    hdr = open("cdna_kernels/%s.s.ref" % NAME).read().split("; Override launch")[0]
    out = [hdr.rstrip(), "; Generated by a hand-written python generator (persistent fused kernel).",
           "; @launch grid=(256,1,1) block=(256,1,1) lds=%d" % LDS_BYTES,
           '.amdgcn_target "amdgcn-amd-amdhsa--gfx950"', ".text", ".globl %s_kernel" % NAME, ".p2align 8",
           ".type %s_kernel,@function" % NAME, ".set CODE_NL, %d" % min(64, (n_i * 8 // 128) // 32 + 1), "%s_kernel:" % NAME]
    out += [i.text for i in ins]
    out += ['.section .rodata,"a"', ".p2align 6", ".amdhsa_kernel %s_kernel" % NAME,
            "  .amdhsa_next_free_vgpr 512", "  .amdhsa_next_free_sgpr 102", "  .amdhsa_accum_offset 256",
            "  .amdhsa_group_segment_fixed_size 0", "  .amdhsa_kernarg_size 80", "  .amdhsa_user_sgpr_count 2",
            "  .amdhsa_user_sgpr_kernarg_segment_ptr 1", "  .amdhsa_system_sgpr_workgroup_id_x 1",
            "  .amdhsa_float_denorm_mode_32 3", ".end_amdhsa_kernel", ""]
    open(sys.argv[1], "w").write("\n".join(out))
    open(sys.argv[1] + ".stamps", "w").write("\n".join(STAMPS))
    print("instructions: %d, hazard nops: %d forced bg: %d" % (n_i, nn, FORCED[0]))
main()
```

```python
import sys, math, struct
from asmlib import *

NAME = "interleave_layers__sliding_local_dilated__glu_gated_swiglu__prompt"
OPT = dict(stop=99, stamps=0, forceslow=0, pretouch=1, p1_gap1=72, at_n1=6, p1_early1=6, p3_gap1=110, p3_gap0=64, p1_early0=14, at_n0=4, p4_gap=100, g1_bgs0=4, g1_bgs1=24, p3_xa=14, wfp=1, p1_gap0=70, wfl=9, p3_x0=5, p4_x0=8, p2_x0=8, p1_x0=4)
for a in sys.argv[2:]:
    k_, v_ = a.split("="); OPT[k_] = int(v_, 0)

def f2u(x): return struct.unpack("<I", struct.pack("<f", x))[0]

OFF_EPOCH = 0; OFF_EG = 4096; OFF_HELLO = 0x2000; OFF_FLAG = 0x10000; OFF_HFLAG = 0x48000
OFF_WF1 = 0x50000; OFF_WF2 = 0x58000; OFF_STAMP = 0x60000
OFF_PWQ = 0x100000; OFF_PWO = 0x250000; OFF_PW13 = 0x2C0000; OFF_PW2 = 0x5D0000
OFF_CQ = 0x760000; OFF_C13 = 0x780000
ALIAS = OPT.get('alias', 1)
OFF_O = [0x800000, 0xC00000 if ALIAS else 0xA00000]; OFF_X1 = [0xC00000, 0x800000 if ALIAS else 0xE00000]; OFF_X2 = 0x800000 if ALIAS else 0x1000000
OFF_HALO = 0x1200000; OFF_H = [0x1400000, 0x1400000 if ALIAS else 0x1C00000]; WS_USED = 0x2400000
XST = 114688
HST = 14336
L_PWQ = 0; L_PWO = 86016; L_X = 151552; L_TAB = 159744
L_CQ = L_TAB; L_C13 = L_TAB + 512; L_MEAN = L_TAB + 1536; L_RSTD = L_TAB + 2176; L_HSP = L_TAB + 2816
L_TP = [[28672, 57344, 0, 86016, 114688, 28672, 57344], [0, 28672, 57344, 86016, 114688, 0, 28672]]
L_DUM = [L_TAB + 2048, L_TAB + 2048]; L_HP = 0; L_RED = 110592
L_ROLE = 49152; L_RES = L_X; L_R4 = L_ROLE + 16384; L_R1 = L_ROLE + 24576; L_HXP = [L_PWO, L_PWO + 49152]
def L_WQ(s): return 114688 + s * 6144 if s < 6 else (s - 6) * 6144
LDS_BYTES = 163840
sWS = "s[24:27]"; sX = "s[28:31]"; sOUT = "s[32:35]"; sRAW = "s[36:39]"; sRAW2 = "s[40:43]"
sC, sM, sW, sCB, sTH, sE, sEn, sEg, sFast, sIdle = ["s%d" % i for i in range(44, 54)]
sT = ["s%d" % i for i in range(54, 60)]
sCl17, sCl19, sBud, sXcc = "s60", "s61", "s62", "s63"
M_OWN = ["s[%d:%d]" % (64 + 2 * r, 65 + 2 * r) for r in range(4)]
M_PRV = ["s[%d:%d]" % (72 + 2 * r, 73 + 2 * r) for r in range(4)]
M_PR0 = ["s[%d:%d]" % (80 + 2 * r, 81 + 2 * r) for r in range(4)]
sPWQ, sPWO, sPW13, sPW2 = "s88", "s89", "s90", "s91"
sD0, sD1, sD2 = "s92", "s93", "s94"
sW7k, sW4k, sQs, sPWQ7, sQm, sKey, sPW137, sBG, sB2 = ["s%d" % i for i in range(4, 13)]
sWQr, sW3r, sW1r, sW2r, sWOr = "s[36:39]", "s[40:43]", "s[88:91]", "s[12:15]", "s[16:19]"
sRB = "s3"; sM3 = "s[20:21]"; sPoll = sFast; sF0, sF1 = "s22", "s23"
sN = ["s%d" % i for i in range(36, 44)]
sA0, sA1 = "s95", "s96"
sStamp = "s[98:99]"; sStN = "s97"
vLane, vL0, vL64, vL128, vNinf, vL15, vG = "v1", "v2", "v3", "v4", "v5", "v6", "v7"
RES = 8
vPoll, vPo, vTag, vWo = "v16", "v17", "v18", "v19"
vOnes = 20
vJunk = "v16"
vStat = "v25"
vT = ["v%d" % i for i in range(26, 32)]

def V(n, cnt=1): return "v%d" % n if cnt == 1 else "v[%d:%d]" % (n, n + cnt - 1)
def A(n, cnt=1): return "a%d" % n if cnt == 1 else "a[%d:%d]" % (n, n + cnt - 1)
def lds(addr):
    b = addr >> 16
    return (vL0, vL64, vL128)[b], addr & 0xFFFF
_lab = [0]
def L(p="L"):
    _lab[0] += 1; return "%s%d" % (p, _lab[0])

STAMPS = []
def stamp(p, name):
    if not OPT["stamps"]: return
    idx = len(STAMPS); STAMPS.append(name); assert idx < 128
    p.e("%s %s" % ("s_memrealtime" if name.startswith("R") else "s_memtime", sStamp))
    p.e("s_waitcnt lgkmcnt(0)")
    p.e("v_writelane_b32 v%d, s98, %d" % (0 if idx < 64 else 24, idx % 64))

def stamp3(p, name):
    if OPT['stamps'] >= 3: stamp(p, name)

def stamp2(p, name):
    if OPT['stamps'] >= 2: stamp(p, name)

def dma_linear(p, sbase, src_const, lds_addr, nfr, mods=""):
    per = nfr // 4; assert per * 4 == nfr
    toks = []
    p.e("s_mul_i32 %s, %s, %d" % (sD0, sW, per * 1024))
    p.e("s_add_u32 %s, %s, %s" % (sD1, sD0, sbase))
    for g0 in range(0, per, 4):
        p.e("s_add_u32 m0, %s, %d" % (sD0, lds_addr + g0 * 1024))
        p.e("s_add_u32 %s, %s, %d" % (sD2, sD1, src_const + g0 * 1024))
        for u in range(min(4, per - g0)):
            toks.append(p.e("buffer_load_dwordx4 %s, %s, %s offen offset:%d %s lds" % (vL0, sWS, sD2, u * 1024, mods)))
    return toks

def poll(p, soff, stag, voff, out=None):
    lp, ld = L("Lp"), L("Ld")
    old = p.maybe; p.maybe = old or "poll"
    p.e("%s:" % lp)
    p.e("buffer_load_dword %s, %s, %s, %s offen sc1" % (vPoll, voff, sWS, soff))
    p.e("s_waitcnt vmcnt(0)")
    p.e("v_cmp_ne_u32 vcc, %s, %s" % (stag, vPoll))
    p.e("s_cbranch_vccz %s" % (out or ld))
    p.e("s_sub_u32 %s, %s, 1" % (sBud, sBud))
    p.e("s_cbranch_scc0 %s" % lp)
    p.e("s_mov_b32 %s, 0" % sBud)
    p.e("%s:" % ld)
    p.maybe = old

def flag_store(p, soff, stag, sc1):
    p.e("v_mov_b32 %s, %s" % (vTag, stag))
    p.e("s_mov_b64 exec, 1")
    p.e("buffer_store_dword %s, off, %s, %s %s" % (vTag, sWS, soff, "sc1" if sc1 else ""))
    p.e("s_mov_b64 exec, -1")

def xgroup_reduce(p, regs, op, tmp):
    for perm in ("v_permlane16_swap_b32", "v_permlane32_swap_b32"):
        for r, t in zip(regs, tmp): p.e("v_mov_b32 %s, %s" % (t, r))
        for r, t in zip(regs, tmp): p.e("%s %s, %s" % (perm, r, t))
        for r, t in zip(regs, tmp): p.e("%s %s, %s, %s" % (op, r, r, t))

def finish_stats(p, s1, s2, nmean, rstd, tmp):
    p.e("v_mul_f32 %s, 0x%x, %s" % (nmean, f2u(-1.0 / 448), s1))
    p.e("v_mul_f32 %s, %s, %s" % (tmp, nmean, nmean))
    p.e("v_fma_f32 %s, %s, %s, -%s" % (tmp, s2, sInv448, tmp))
    p.e("v_max_f32 %s, 0, %s" % (tmp, tmp))
    p.e("v_add_f32 %s, 0x%x, %s" % (tmp, f2u(1e-5), tmp))
    p.e("v_rsq_f32 %s, %s" % (rstd, tmp))
sInv448 = "s100"

def startup(p):
    p.e("s_cmp_ge_u32 s2, 256")
    p.e("s_cbranch_scc1 Lend")
    if OPT["stamps"]:
        p.e("s_memrealtime s[64:65]"); p.e("s_memtime s[66:67]")
    k1 = p.e("s_load_dwordx16 s[4:19], s[0:1], 0")
    k2 = p.e("s_load_dwordx4 s[20:23], s[0:1], 64")
    p.e("s_getpc_b64 s[36:37]")
    p.e("Lpc:")
    p.e("s_lshr_b32 %s, s2, 3" % sT[0])
    p.e("v_and_b32 %s, 63, v0" % vLane)
    p.e("v_lshrrev_b32 v26, 6, v0")
    p.e("s_mul_i32 %s, %s, CODE_NL" % (sT[1], sT[0]))
    p.e("v_min_u32 v27, CODE_NL-1, %s" % vLane)
    p.e("v_add_u32 v27, %s, v27" % sT[1])
    p.e("v_lshlrev_b32 v27, 7, v27")
    p.e("v_min_u32 v27, Lcode_end-Lpc-4, v27")
    p.e("v_readfirstlane_b32 %s, v26" % sW)
    p.e("global_load_dword %s, v27, s[36:37]" % vJunk)
    p.e("s_and_b32 %s, s2, 7" % sT[1])
    p.e("s_lshr_b32 %s, %s, 4" % (sC, sT[0]))
    p.e("s_lshl1_add_u32 %s, %s, %s" % (sC, sT[1], sC))
    p.e("s_and_b32 %s, %s, 15" % (sM, sT[0]))
    p.e("s_cmp_ge_u32 %s, 7" % sM)
    p.e("s_cselect_b32 %s, 1, 0" % sTH)
    p.e("s_cselect_b32 %s, 7, 0" % sT[1])
    p.e("s_sub_u32 %s, %s, %s" % (sCB, sM, sT[1]))
    p.e("s_cmp_ge_u32 %s, 14" % sM)
    p.e("s_cselect_b32 %s, 1, 0" % sIdle)
    p.e("s_cselect_b32 %s, 7, 0" % sT[1])
    p.e("s_sub_u32 %s, %s, %s" % (sCB, sCB, sT[1]))
    p.e("v_lshlrev_b32 %s, 4, %s" % (vL0, vLane))
    p.e("v_and_b32 %s, 15, %s" % (vL15, vLane))
    p.e("v_lshrrev_b32 %s, 4, %s" % (vG, vLane))
    p.e("v_lshrrev_b32 v28, 3, %s" % vLane)
    p.e("v_and_b32 v29, 7, %s" % vLane)
    p.e("v_lshlrev_b32 v29, 4, v29")
    p.wait(k1, k2)
    if OPT["stamps"]:
        p.e("s_memtime s[68:69]"); p.e("s_waitcnt lgkmcnt(0)")
    for srd, lo, size in ((24, 22, WS_USED), (28, 4, 1835008), (32, 18, 1835008)):
        p.e("s_mov_b32 s%d, s%d" % (srd, lo)); p.e("s_mov_b32 s%d, s%d" % (srd + 1, lo + 1))
        p.e("s_mov_b32 s%d, 0x%x" % (srd + 2, size)); p.e("s_mov_b32 s%d, 0x20000" % (srd + 3))
    def srd(n, lo, size):
        p.e("s_mov_b32 s%d, s%d" % (n, lo)); p.e("s_mov_b32 s%d, s%d" % (n + 1, lo + 1))
        p.e("s_mov_b32 s%d, %d" % (n + 2, size)); p.e("s_mov_b32 s%d, 0x20000" % (n + 3))
    srd(36, 6, 1204224)
    if OPT.get("xtouch", 1):
        p.e("s_lshl2_add_u32 %s, %s, %s" % (sT[0], sM, sW)); p.e("s_lshl_b32 %s, %s, 11" % (sT[0], sT[0]))
        p.e("s_mul_i32 %s, %s, 114688" % (sT[1], sC)); p.e("s_add_u32 %s, %s, %s" % (sT[0], sT[0], sT[1]))
        p.e("s_sub_u32 %s, %s, 14336" % (sT[1], sT[0])); p.e("s_cselect_b32 %s, %s, %s" % (sT[0], sT[0], sT[1]))
        p.e("v_lshlrev_b32 v30, 7, %s" % vL15)
        p.e("s_mov_b64 exec, 0xffff")
        p.e("buffer_load_dword %s, v30, %s, %s offen" % (vJunk, sX, sT[0]))
        p.e("s_mov_b64 exec, -1")
    p.e("s_lshl_b32 %s, %s, 7" % (sT[0], sC))
    p.e("s_lshl_b32 %s, %s, 5" % (sT[1], sW))
    p.e("s_add_u32 %s, %s, %s" % (sT[1], sT[1], sT[0]))
    p.e("s_mul_i32 %s, %s, 896" % (sA0, sT[1]))
    p.e("s_mul_i32 %s, %s, 28672" % (sA1, sW))
    p.e("v_and_b32 v25, 7, %s" % vLane)
    p.e("v_xor_b32 v25, v25, v28")
    p.e("v_lshlrev_b32 v25, 4, v25")
    p.e("s_movk_i32 %s, 896" % sT[2])
    p.e("v_mad_u32_u24 v25, v28, %s, v25" % sT[2])
    xd = []
    def xdma(i):
        rb, lc = i // 7, i % 7
        if lc == 0 and rb: p.e("s_add_u32 %s, %s, 7168" % (sA0, sA0))
        p.e("s_add_u32 m0, %s, %d" % (sA1, i * 1024 - lc * 128))
        xd.append(p.e("buffer_load_dwordx4 v25, %s, %s offen offset:%d lds" % (sX, sA0, lc * 128)))
    srd(40, 14, 1605632); srd(88, 12, 1605632); srd(12, 16, 1605632); srd(16, 8, 401408)
    def wtouch(lst, p=p):
        p.e("s_lshl2_add_u32 %s, s2, %s" % (sT[0], sW))
        p.e("v_lshlrev_b32 v30, 7, %s" % vLane)
        for sr, n in lst:
            p.e("s_mul_i32 %s, %s, %d" % (sT[1], sT[0], n * 128))
            p.e("s_mov_b64 exec, 0x%x" % ((1 << n) - 1))
            p.e("buffer_load_dword %s, v30, %s, %s offen" % (vJunk, sr, sT[1]))
        p.e("s_mov_b64 exec, -1")
    low = [(sW1r, 13), (sW3r, 13), (sWOr, 4), (sW2r, 13)]
    TM = OPT.get("tmode", 3)
    if TM in (1, 3): wtouch([(sWQr, 10)])
    if TM == 2: wtouch([(sWQr, 10)] + low)
    if OPT["stamps"]:
        p.e("s_lshl_b32 %s, s2, 2" % sStN); p.e("s_add_u32 %s, %s, %s" % (sStN, sStN, sW))
        p.e("s_lshl_b32 %s, %s, 9" % (sStN, sStN)); p.e("s_add_u32 %s, %s, %d" % (sStN, sStN, OFF_STAMP))
        for nm_, sr in (("entry", "s66"), ("R0", "s64"), ("S.karg", "s68")):
            idx = len(STAMPS); STAMPS.append(nm_)
            p.e("v_writelane_b32 v0, %s, %d" % (sr, idx))
    p.e("s_lshl_b32 %s, %s, 7" % (sT[0], sC))
    p.e("s_lshl_b32 %s, %s, 7" % (sT[1], sCB))
    p.e("s_add_u32 %s, %s, %d" % (sT[1], sT[1], OFF_EG))
    p.e("s_add_u32 %s, %s, 128" % (sT[2], sT[0]))
    e1 = p.e("s_load_dword %s, s[22:23], %s" % (sE, sT[0]))
    e2 = p.e("s_load_dword %s, s[22:23], %s" % (sEn, sT[2]))
    e3 = p.e("s_load_dword %s, s[22:23], %s" % (sEg, sT[1]))
    p.e("s_lshr_b32 %s, %s, 1" % (sT[0], sW)); p.e("s_mul_i32 %s, %s, 192" % (sT[1], sT[0]))
    p.e("s_mul_i32 %s, %s, 56" % (sT[2], sM)); p.e("s_movk_i32 %s, 2688" % sT[3]); p.e("s_movk_i32 %s, 896" % sT[4])
    for u in range(3):
        r = 244 + u
        p.e("v_add_u32 v26, %s, %s" % (sT[1], vLane))
        if u: p.e("v_add_u32 v26, %d, v26" % (64 * u))
        p.e("v_mul_u32_u24 v27, 5462, v26"); p.e("v_lshrrev_b32 v27, 16, v27")
        p.e("v_mul_u32_u24 v28, 12, v27"); p.e("v_sub_u32 v26, v26, v28")
        p.e("v_lshrrev_b32 v28, 2, v27"); p.e("v_lshrrev_b32 v29, 3, v27"); p.e("v_xor_b32 v28, v28, v29")
        p.e("v_and_b32 v28, 1, v28"); p.e("v_lshlrev_b32 v28, 1, v28"); p.e("v_xor_b32 v26, v26, v28")
        p.e("v_lshrrev_b32 v28, 2, v26"); p.e("v_and_b32 v26, 3, v26")
        p.e("v_lshl_add_u32 v26, v26, 4, %s" % sT[2])
        p.e("v_mad_u32_u24 v26, v28, %s, v26" % sT[4])
        p.e("v_mad_u32_u24 v%d, v27, %s, v26" % (r, sT[3]))
        if u: p.e("v_subrev_u32 v%d, %d, v%d" % (r, 1024 * u, r))
    p.e("s_and_b32 %s, %s, 1" % (sT[1], sW))
    p.e("s_mul_i32 %s, %s, 86016" % (sQs, sT[1]))
    p.e("s_mul_i32 %s, %s, 6144" % (sQm, sT[1])); p.e("s_mul_i32 %s, %s, 3072" % (sT[0], sT[0])); p.e("s_add_u32 %s, %s, %s" % (sQm, sQm, sT[0]))
    p.e("v_add_u32 %s, 0x10000, %s" % (vL64, vL0))
    p.e("v_add_u32 %s, 0x20000, %s" % (vL128, vL0))
    p.e("v_mov_b32 %s, 0xff800000" % vNinf)
    p.e("v_mov_b32 %s, 0" % vPo)
    for i in range(4): p.e("v_mov_b32 v%d, 0x3f803f80" % (vOnes + i))
    p.e("s_mov_b32 %s, 0x%x" % (sInv448, f2u(1.0 / 448)))
    p.e("s_lshl_b32 %s, %s, 17" % (sCl17, sC))
    p.e("s_lshl_b32 %s, %s, 19" % (sCl19, sC))
    p.e("s_mov_b32 %s, 60000" % sBud)
    p.e("s_mov_b32 s20, 0"); p.e("s_mov_b32 s21, 0xffff0000")
    for r in range(4):
        p.e("v_lshl_add_u32 v26, %s, 2, %d" % (vG, r))
        p.e("v_sub_u32 v27, %s, v26" % vL15)
        p.e("v_and_b32 v28, 1, v27")
        p.e("v_cmp_eq_u32 vcc, 0, v28")
        p.e("v_cmp_le_i32_e64 %s, 0, v27" % M_OWN[r])
        p.e("v_cmp_ge_i32_e64 %s, -2, v27" % M_PRV[r])
        p.e("s_and_b64 %s, %s, vcc" % (M_OWN[r], M_OWN[r]))
        p.e("s_and_b64 %s, %s, vcc" % (M_PRV[r], M_PRV[r]))
    p.e("s_or_b32 %s, %s, %s" % (sT[0], sC, sW))
    p.e("s_cmp_eq_u32 %s, 0" % sT[0])
    for r in range(4): p.e("s_cselect_b64 %s, 0, %s" % (M_PR0[r], M_PRV[r]))
    stamp(p, "S.const")
    p.wait(e1, e2, e3)
    for s in (sE, sEn, sEg):
        p.e("s_mul_i32 %s, %s, 0x9e3779b1" % (s, s)); p.e("s_add_u32 %s, %s, 0x7f4a7c15" % (s, s))
    lh = L()
    p.e("s_getreg_b32 %s, hwreg(HW_REG_XCC_ID)" % sXcc)
    p.e("s_and_b32 %s, %s, 15" % (sXcc, sXcc))
    p.e("s_andn2_b32 %s, %s, 15" % (sT[0], sE))
    p.e("s_or_b32 %s, %s, %s" % (sXcc, sXcc, sT[0]))
    p.e("s_mov_b32 %s, 2" % sFast)
    p.e("s_cmp_lg_u32 %s, 3" % sW); p.e("s_cbranch_scc1 %s" % lh)
    p.maybe = "h"
    p.e("s_lshl_b32 %s, %s, 11" % (sT[0], sC)); p.e("s_lshl_b32 %s, %s, 7" % (sT[1], sM))
    p.e("s_add_u32 %s, %s, %s" % (sT[0], sT[0], sT[1])); p.e("s_add_u32 %s, %s, %d" % (sT[0], sT[0], OFF_HELLO))
    flag_store(p, sT[0], sXcc, True)
    p.maybe = False
    p.e("%s:" % lh)
    p.e("v_and_b32 v80, 7, %s" % vLane)
    p.e("v_bfe_u32 v81, %s, 3, 1" % vLane)
    p.e("v_xor_b32 v82, %s, v80" % vG)
    p.e("v_lshlrev_b32 v82, 4, v82")
    p.e("v_lshl_add_u32 v82, v80, 7, v82")
    p.e("s_movk_i32 %s, 7168" % sT[2])
    p.e("v_mad_u32_u24 v82, v81, %s, v82" % sT[2])
    p.e("v_add_u32 v82, %s, v82" % sA1)
    p.e("v_xor_b32 v83, 64, v82")
    def dots(j):
        q = Prog()
        for i in range(56):
            reg = 128 + 56 * j + i
            q.e("v_dot2_f32_bf16 v%d, v%d, v%d, %s" % (96 + 2 * j, reg, vOnes, "0" if i == 0 else "v%d" % (96 + 2 * j)))
            q.e("v_dot2_f32_bf16 v%d, v%d, v%d, %s" % (97 + 2 * j, reg, reg, "0" if i == 0 else "v%d" % (97 + 2 * j)))
        return q.ins
    def xreads(j):
        return [p.e("ds_read_b128 %s, v%d offset:%d" % (V(128 + (j * 14 + s_) * 4, 4), 82 + (s_ & 1), j * 14336 + (s_ >> 1) * 1024)) for s_ in range(14)]
    bg = BGQ
    for i in range(28): xdma(i)
    wq = [rawq(p, 0)]
    stamp(p, "S.xiss")
    p.wait(xd[:14]); r0 = xreads(0)
    wq += [rawq_bg(bg, 1), rawq_bg(bg, 2)]
    if TM == 1:
        q = Prog(); wtouch(low, q); bg.append(Item(q.ins))
    if TM == 3:
        q = Prog(); wtouch([(sWOr, 4)], q); bg.append(Item(q.ins))
    bg.pt(p, 3)
    p.wait(r0)
    p.add(spr(dots(0), bg, OPT.get("tail_gap", 100)))
    while bg: bg.pt(p)
    p.wait(xd)
    stamp(p, "S.xin")
    xreads(1)
    p.e("v_lshrrev_b32 v28, 3, %s" % vLane)
    p.e("v_and_b32 v29, 7, %s" % vLane)
    p.e("v_lshrrev_b32 v26, 4, %s" % vLane); p.e("v_lshlrev_b32 v26, 1, v26"); p.e("v_xor_b32 v26, v26, v29")
    p.e("v_lshlrev_b32 v26, 4, v26"); p.e("s_movk_i32 %s, 896" % sT[2]); p.e("v_mad_u32_u24 %s, v28, %s, v26" % (vWo, sT[2]))
    p.e("v_lshlrev_b32 v29, 4, v29")
    p.e("v_mad_u32_u24 v127, v28, %s, v29" % sT[2])
    p.e("s_movk_i32 %s, 3584" % sT[2]); p.e("v_mad_u32_u24 v126, v28, %s, v29" % sT[2])
    p.e("s_mul_i32 %s, %s, 224" % (sRB, sM)); p.e("s_mul_i32 %s, %s, 114688" % (sT[1], sC)); p.e("s_add_u32 %s, %s, %s" % (sRB, sRB, sT[1]))
    p.e("s_add_u32 %s, %s, %s" % (sRB, sRB, sA1))
    p.e("s_lshl1_add_u32 s22, %s, %s" % (sC, sTH)); p.e("s_mul_i32 s22, s22, 57344")
    p.e("s_lshl_b32 %s, %s, 7" % (sT[1], sCB)); p.e("s_add_u32 s22, s22, %s" % sT[1])
    p.e("s_mul_i32 %s, %s, 7168" % (sT[1], sW)); p.e("s_add_u32 s22, s22, %s" % sT[1])
    p.e("s_cmp_lg_u32 %s, 0" % sIdle); p.e("s_cselect_b32 s22, 0x40000000, s22")
    p.e("s_cmp_ge_u32 %s, 14" % sC); p.e("s_cselect_b32 s22, 0x40000000, s22"); p.e("s_cselect_b32 %s, 0x40000000, %s" % (sRB, sRB))
    p.e("s_lshl_b32 s23, %s, 10" % sW)
    p.e("s_mul_i32 s9, %s, 86016" % sC); p.e("s_mul_i32 %s, %s, 21504" % (sT[1], sW)); p.e("s_add_u32 s9, s9, %s" % sT[1])
    p.e("s_cmp_ge_u32 %s, 14" % sC); p.e("s_cselect_b32 s9, 0x40000000, s9")
    p.e("v_lshrrev_b32 v26, 2, %s" % vL15); p.e("v_and_b32 v27, 3, %s" % vLane); p.e("s_movk_i32 %s, 896" % sT[2])
    p.e("v_mul_u32_u24 v247, 2688, %s" % vG); p.e("v_lshl_add_u32 v247, v27, 4, v247"); p.e("v_mad_u32_u24 v247, v26, %s, v247" % sT[2])
    p.e("s_mul_i32 %s, %s, 56" % (sT[0], sM)); p.e("v_add_u32 v247, %s, v247" % sT[0])
    p.e("v_cmp_eq_u32 vcc, 3, v26"); p.e("v_bfrev_b32 v31, 1"); p.e("v_cndmask_b32 v247, v247, v31, vcc")
    p.waitall(vm=False)
    p.e("s_barrier")
    role = []
    for half in range(2):
        for mat, sr in enumerate((sW1r, sW3r)):
            q = Prog()
            q.e("s_add_u32 m0, s23, %d" % (L_ROLE + half * 8192 + mat * 4096 - half * 128))
            q.e("buffer_load_dwordx4 v126, %s, %s offen offset:%d nt lds" % (sr, sRB, half * 128))
            role.append(Item(q.ins))
    for u in range(2):
        q = Prog()
        q.e("s_add_u32 m0, s23, %d" % (L_R4 + u * 4096))
        if u: q.e("s_add_u32 s22, s22, 28672")
        q.e("buffer_load_dwordx4 v127, %s, s22 offen nt lds" % sW2r)
        role.append(Item(q.ins))
    for u in range(2):
        q = Prog()
        q.e("s_lshl_b32 %s, s23, 1" % sBG); q.e("s_add_u32 m0, %s, %d" % (sBG, L_R1 + u * 1024))
        if u: q.e("s_add_u32 s9, s9, 10752")
        q.e("buffer_load_dwordx4 v247, %s, s9 offen lds" % sWQr)
        role.append(Item(q.ins))
    pp_ = p; p = Prog()
    p.e("s_mul_i32 %s, %s, 86016" % (sPWQ, sM)); p.e("s_add_u32 %s, %s, %d" % (sPWQ, sPWQ, OFF_PWQ))
    p.e("s_mul_i32 %s, %s, 200704" % (sPW13, sM)); p.e("s_add_u32 %s, %s, %d" % (sPW13, sPW13, OFF_PW13))
    p.e("s_mul_i32 %s, %s, 229376" % (sPW2, sCB)); p.e("s_mul_i32 %s, %s, 57344" % (sT[0], sW))
    p.e("s_add_u32 %s, %s, %s" % (sPW2, sPW2, sT[0])); p.e("s_add_u32 %s, %s, %d" % (sPW2, sPW2, OFF_PW2))
    p.e("s_mul_i32 %s, %s, 7168" % (sW7k, sW)); p.e("s_lshl_b32 %s, %s, 12" % (sW4k, sW))
    p.e("s_add_u32 %s, %s, %s" % (sPWQ7, sPWQ, sW7k)); p.e("s_add_u32 %s, %s, %s" % (sPW137, sPW13, sW7k))
    p.e("s_mul_i32 %s, %s, 25088" % (sPWO, sW)); p.e("s_lshl_b32 %s, %s, 7" % (sT[0], sCB)); p.e("s_add_u32 %s, %s, %s" % (sPWO, sPWO, sT[0]))
    role.append(Item(p.ins)); p = pp_
    stamp(p, "S.role2")
    return wq, dots(1), role

def rawq_bg(bg, ch):
    q = Prog(); t = rawq(q, ch)
    bg.append(Item(q.ins[:3]))
    for k in (3, 4):
        it = Item([q.ins[k]]); it.cont = True; bg.append(it)
    return t

def rawq(p, ch):
    p.e("s_add_u32 m0, %s, %d" % (sQm, L_WQ(2 * ch)))
    p.e("s_add_u32 %s, %s, %d" % (sBG, sQs, ch * 172032))
    return [p.e("buffer_load_dwordx4 v%d, %s, %s offen offset:%d lds" % (244 + u, sWQr, sBG, u * 1024)) for u in range(3)]

def repack(p):
    sa, sb, sc_, sd, se, sf = "s40", "s41", "s42", "s43", "s22", "s23"
    p.e("v_lshrrev_b32 v26, 2, %s" % vL15)
    p.e("v_and_b32 v27, 3, %s" % vLane)
    p.e("v_lshlrev_b32 v27, 3, v27")
    p.e("v_lshrrev_b32 v30, 1, %s" % vG)
    p.e("v_and_b32 v29, 1, %s" % vG)
    p.e("v_lshl_add_u32 v28, v30, 2, v26")
    p.e("v_lshl_add_u32 v28, v28, 7, v27")
    p.e("v_lshl_add_u32 v28, v29, 12, v28")
    p.e("s_lshr_b32 %s, %s, 1" % (sT[0], sW)); p.e("s_and_b32 %s, %s, 1" % (sT[1], sW)); p.e("s_lshl_b32 %s, %s, 6" % (sT[1], sT[1]))
    p.e("s_lshl_b32 %s, %s, 13" % (sT[2], sT[0])); p.e("s_add_u32 %s, %s, %s" % (sT[2], sT[2], sT[1])); p.e("s_add_u32 %s, %s, %d" % (sT[2], sT[2], L_ROLE))
    p.e("v_add_u32 v28, %s, v28" % sT[2])
    for i in range(2):
        for pp in range(2):
            f = 32 + (i * 2 + pp) * 4
            p.e("ds_read_b64_tr_b16 %s, v28 offset:%d" % (A(f, 2), pp * 1024 + i * 32))
            p.e("ds_read_b64_tr_b16 %s, v28 offset:%d" % (A(f + 2, 2), pp * 1024 + i * 32 + 2048))
    p.e("v_lshl_add_u32 v30, v30, 4, v26")
    p.e("v_lshl_add_u32 v30, v29, 2, v30")
    p.e("v_lshl_add_u32 v30, v30, 7, v27")
    p.e("s_lshl_b32 %s, %s, 12" % (sT[2], sT[0])); p.e("s_add_u32 %s, %s, %s" % (sT[2], sT[2], sT[1])); p.e("s_add_u32 %s, %s, %d" % (sT[2], sT[2], L_R4))
    p.e("v_add_u32 v30, %s, v30" % sT[2])
    for t in range(2):
        p.e("ds_read_b64_tr_b16 %s, v30 offset:%d" % (A(48 + 4 * t, 2), t * 32))
        p.e("ds_read_b64_tr_b16 %s, v30 offset:%d" % (A(50 + 4 * t, 2), t * 32 + 1024))
    p.e("v_lshl_add_u32 v31, %s, 3, v26" % vG); p.e("v_lshl_add_u32 v31, v31, 8, v27")
    p.e("s_lshl_b32 %s, %s, 6" % (sT[2], sW)); p.e("s_add_u32 %s, %s, %d" % (sT[2], sT[2], L_R1)); p.e("v_add_u32 v31, %s, v31" % sT[2])
    for t in range(2):
        p.e("ds_read_b64_tr_b16 %s, v31 offset:%d" % (A(56 + 4 * t, 2), t * 32))
        p.e("ds_read_b64_tr_b16 %s, v31 offset:%d" % (A(58 + 4 * t, 2), t * 32 + 1024))
    p.e("s_mul_i32 %s, %s, 6144" % (se, sC)); p.e("s_lshl_b32 %s, %s, 11" % (sT[1], sW)); p.e("s_add_u32 %s, %s, %s" % (se, se, sT[1]))
    p.e("s_add_u32 %s, %s, %s" % (se, se, sPWQ))
    p.e("s_mul_i32 %s, %s, 57344" % (sa, sW)); p.e("s_add_u32 %s, %s, %s" % (sa, sa, sPW13))
    p.e("s_lshl_b32 %s, %s, 11" % (sT[1], sC)); p.e("s_add_u32 %s, %s, %s" % (sa, sa, sT[1]))
    p.e("s_add_u32 %s, %s, 28672" % (sb, sa))
    p.e("s_mul_i32 %s, %s, 14" % (sc_, sM)); p.e("s_add_u32 %s, %s, %s" % (sc_, sc_, sC))
    p.e("s_mul_i32 %s, %s, 896" % (sc_, sc_))
    p.e("s_lshl_b32 %s, %s, 8" % (sT[1], sW))
    p.e("s_add_u32 %s, %s, %s" % (sc_, sc_, sT[1])); p.e("s_add_u32 %s, %s, %d" % (sc_, sc_, OFF_C13))
    p.e("s_add_u32 %s, %s, 128" % (sf, sc_))
    p.e("s_lshl1_add_u32 %s, %s, %s" % (sd, sC, sTH)); p.e("s_lshl_b32 %s, %s, 13" % (sd, sd))
    p.e("s_mul_i32 %s, %s, 229376" % (sT[1], sCB)); p.e("s_add_u32 %s, %s, %s" % (sd, sd, sT[1]))
    p.e("s_lshl_b32 %s, %s, 11" % (sT[1], sW)); p.e("s_add_u32 %s, %s, %s" % (sd, sd, sT[1])); p.e("s_add_u32 %s, %s, %d" % (sd, sd, OFF_PW2))
    p.e("s_cmp_ge_u32 %s, 14" % sC)
    for r_ in (sa, sb, sc_, sd, se, sf): p.e("s_cselect_b32 %s, 0x40000000, %s" % (r_, r_))
    p.e("s_cmp_eq_u32 %s, 3" % sW)
    for r_ in (sb, se, sf): p.e("s_cselect_b32 %s, 0x40000000, %s" % (r_, r_))
    p.e("s_cmp_ge_u32 %s, 14" % sM); p.e("s_cselect_b32 %s, 0x40000000, %s" % (sd, sd))
    p.e("v_lshlrev_b32 v127, 2, %s" % vLane)
    p.waitall(vm=False)
    for i in range(2):
        p.e("v_mfma_f32_32x32x16_bf16 %s, %s, %s, 0" % (A(64 + 16 * i, 16), V(vOnes, 4), A(32 + 8 * i, 4)))
        p.e("v_mfma_f32_32x32x16_bf16 %s, %s, %s, %s" % (A(64 + 16 * i, 16), V(vOnes, 4), A(36 + 8 * i, 4), A(64 + 16 * i, 16)))
    items = []
    for r0, so in ((32, sa), (40, sb), (48, sd), (56, se)):
        for k in range(2):
            q = Prog(); q.e("buffer_store_dwordx4 %s, %s, %s, %s offen offset:%d sc1" % (A(r0 + 4 * k, 4), vL0, sWS, so, k * 1024)); items.append(Item(q.ins))
    q = Prog()
    q.e("s_mov_b32 exec_hi, 0")
    q.e("buffer_store_dword a64, v127, %s, %s offen sc1" % (sWS, sc_))
    q.e("buffer_store_dword a80, v127, %s, %s offen sc1" % (sWS, sf))
    q.e("s_mov_b32 exec_hi, -1")
    items.append(Item(q.ins))
    return items

def wf_flag(p):
    lw = L()
    p.e("s_cmp_lg_u32 %s, 3" % sW); p.e("s_cbranch_scc1 %s" % lw)
    p.maybe = "w3"
    p.e("s_lshl_b32 %s, %s, 11" % (sT[0], sM)); p.e("s_lshl_b32 %s, %s, 7" % (sT[1], sC))
    p.e("s_add_u32 %s, %s, %s" % (sT[0], sT[0], sT[1])); p.e("s_add_u32 %s, %s, %d" % (sT[0], sT[0], OFF_WF2))
    flag_store(p, sT[0], sEg, True)
    p.maybe = False
    p.e("%s:" % lw)

def wf_poll(p):
    lw = L()
    p.e("s_cmp_lg_u32 %s, 3" % sW); p.e("s_cbranch_scc1 %s" % lw)
    p.maybe = "w3"
    p.e("v_mul_u32_u24 v30, 7, %s" % vG); p.e("v_add_u32 v30, %s, v30" % sCB); p.e("v_mov_b32 v31, %s" % sCB)
    p.e("v_cmp_gt_u32 vcc, 16, v30"); p.e("v_cndmask_b32 v30, v31, v30, vcc")
    p.e("v_lshlrev_b32 v30, 11, v30"); p.e("v_lshl_add_u32 v31, %s, 7, v30" % vL15)
    p.e("s_mov_b32 %s, %d" % (sT[0], OFF_WF2))
    poll(p, sT[0], sEg, "v31")
    p.maybe = False
    p.e("%s:" % lw)

def halo_dma0(bg):
    p = Prog(); n0 = 0
    p.e("s_lshl_b32 %s, %s, 7" % (sD0, sC))
    p.e("s_sub_u32 %s, %s, 16" % (sD1, sD0)); p.e("s_mul_i32 %s, %s, 896" % (sD1, sD1))
    halo_s0(p, sD2); p.e("s_lshl_b32 %s, %s, 6" % (sA1, sD2)); p.e("s_add_u32 %s, %s, %s" % (sD1, sD1, sA1))
    p.e("s_cmp_eq_u32 %s, 0" % sC); p.e("s_cselect_b32 %s, 0x40000000, %s" % (sD1, sD1))
    p.e("s_lshl_b32 %s, %s, 10" % (sD2, sD2))
    p.e("v_mul_u32_u24 v123, 896, %s" % vL15); p.e("v_lshl_add_u32 v123, %s, 4, v123" % vG)
    for u in range(4):
        p.e("s_add_u32 m0, %s, %d" % (sD2, L_HXP[0] + u * 1024 - u * 64))
        p.e("buffer_load_dwordx4 v123, %s, %s offen offset:%d lds" % (sX, sD1, u * 64))
    p.e("s_lshl_b32 %s, %s, 6" % (sD1, sTH)); p.e("s_add_u32 %s, %s, %s" % (sD1, sD1, sD0))
    p.e("s_lshl_b32 %s, %s, 4" % (sD2, sW)); p.e("s_add_u32 %s, %s, %s" % (sD1, sD1, sD2))
    p.e("s_mul_i32 %s, %s, 896" % (sD1, sD1)); p.e("s_lshl_b32 %s, %s, 7" % (sD2, sCB)); p.e("s_add_u32 %s, %s, %s" % (sD1, sD1, sD2))
    p.e("s_lshl_b32 %s, %s, 11" % (sA1, sW))
    for rb in range(2):
        if rb: p.e("s_add_u32 %s, %s, 7168" % (sD1, sD1))
        p.e("s_add_u32 m0, %s, %d" % (sA1, L_RES + rb * 1024))
        p.e("buffer_load_dwordx4 v25, %s, %s offen lds" % (sX, sD1))
    cur = Item()
    for i in p.ins:
        cur.append(i)
        if i.tok: bg.append(cur); cur = Item()
    return [i.tok for i in p.ins if i.tok]

def halo_finish0(p, hd):
    HQ = 80
    halo_s0(p, sT[0]); p.e("s_lshl_b32 %s, %s, 10" % (sT[0], sT[0])); p.e("s_add_u32 %s, %s, %d" % (sT[0], sT[0], L_HXP[0]))
    p.e("v_add_u32 v26, %s, %s" % (sT[0], vL0))
    p.e("v_lshrrev_b32 v27, 1, %s" % vG)
    p.e("v_and_b32 v28, 7, %s" % vLane); p.e("v_xor_b32 v27, v27, v28")
    p.e("v_lshlrev_b32 v27, 4, v27")
    p.e("v_lshl_add_u32 v27, %s, 7, v27" % vL15)
    p.e("v_and_b32 v28, 1, %s" % vG)
    p.e("v_lshl_add_u32 v27, v28, 3, v27")
    p.e("s_lshl_b32 %s, %s, 11" % (sT[3], sW)); p.e("s_add_u32 %s, %s, %d" % (sT[3], sT[3], L_RES))
    p.e("v_add_u32 v27, %s, v27" % sT[3])
    for t in range(1, 4): p.e("v_xor_b32 v%d, %d, v27" % (27 + t, 32 * t))
    p.e("v_lshlrev_b32 %s, 11, %s" % (vStat, vG))
    p.e("v_lshl_add_u32 %s, %s, 3, %s" % (vStat, vL15, vStat))
    p.wait(hd)
    rd = [p.e("ds_read_b128 %s, v26 offset:%d" % (V(HQ + 4 * u, 4), u * 1024)) for u in range(4)]
    rd += [p.e("ds_read_b64 %s, v%d" % (V(RES + 2 * t, 2), 27 + t)) for t in range(4)]
    p.e("s_cmp_eq_u32 %s, 3" % sW); p.e("s_cselect_b64 vcc, -1, 0")
    p.wait(rd)
    for i in range(8): p.e("v_cndmask_b32_e64 v%d, v%d, 0, vcc" % (HQ + i, HQ + i))
    for i in range(16):
        p.e("v_dot2_f32_bf16 v100, v%d, v%d, %s" % (HQ + i, vOnes, "0" if i == 0 else "v100"))
        p.e("v_dot2_f32_bf16 v101, v%d, v%d, %s" % (HQ + i, HQ + i, "0" if i == 0 else "v101"))
    xgroup_reduce(p, ["v100", "v101"], "v_add_f32", ["v106", "v107"])
    p.e("s_lshl_b32 %s, %s, 7" % (sT[0], sW)); p.e("s_add_u32 %s, %s, %d" % (sT[0], sT[0], L_HSP))
    p.e("v_lshl_add_u32 v26, %s, 3, %s" % (vL15, sT[0]))
    t = p.e("ds_write_b64 v26, v[100:101]")
    return t

def sT896(p):
    p.e("s_movk_i32 %s, 896" % sT[2]); return sT[2]
def halo_s0(p, dst):
    p.e("s_lshl_b32 %s, %s, 2" % (dst, sW))
    p.e("s_min_u32 %s, %s, 10" % (dst, dst))

def pretouch_o(p, pr):
    if not OPT["pretouch"]: return
    p.e("v_and_b32 v26, 7, %s" % vLane); p.e("v_lshlrev_b32 v26, 7, v26")
    p.e("v_bfe_u32 v27, %s, 3, 1" % vLane); p.e("v_lshl_add_u32 v26, v27, 14, v26")
    p.e("s_lshl_b32 %s, %s, 15" % (sT[0], sW)); p.e("s_lshl_b32 %s, %s, 10" % (sT[1], sM))
    p.e("s_add_u32 %s, %s, %s" % (sT[0], sT[0], sT[1])); p.e("s_add_u32 %s, %s, %s" % (sT[0], sT[0], sCl17))
    p.e("s_add_u32 %s, %s, %d" % (sT[0], sT[0], OFF_O[pr]))
    p.e("s_mov_b64 exec, 0xffff")
    p.e("buffer_load_dword %s, v26, %s, %s offen sc1" % (vJunk, sWS, sT[0]))
    p.e("s_mov_b64 exec, -1")

def xtile_base(p, dst, off):
    p.e("s_lshl_b32 %s, %s, 2" % (dst, sTH)); p.e("s_add_u32 %s, %s, %s" % (dst, dst, sW))
    p.e("s_mul_i32 %s, %s, 14336" % (dst, dst))
    p.e("s_lshl_b32 %s, %s, 11" % (sT[5], sCB)); p.e("s_add_u32 %s, %s, %s" % (dst, dst, sT[5]))
    p.e("s_add_u32 %s, %s, %s" % (dst, dst, sCl17)); p.e("s_add_u32 %s, %s, %d" % (dst, dst, off))
def xstat_base(p, dst, off):
    p.e("s_lshl_b32 %s, %s, 2" % (dst, sTH)); p.e("s_add_u32 %s, %s, %s" % (dst, dst, sW))
    p.e("s_lshl_b32 %s, %s, 7" % (dst, dst))
    p.e("s_lshl_b32 %s, %s, 10" % (sT[5], sCB)); p.e("s_add_u32 %s, %s, %s" % (dst, dst, sT[5]))
    p.e("s_add_u32 %s, %s, %s" % (dst, dst, sCl17)); p.e("s_add_u32 %s, %s, %d" % (dst, dst, off + XST))

def pretouch_x(p, off):
    if not OPT["pretouch"]: return
    xtile_base(p, sT[0], off); xstat_base(p, sT[1], off)
    p.e("v_lshlrev_b32 v26, 7, %s" % vLane)
    p.e("s_mov_b64 exec, 0xffff")
    p.e("buffer_load_dword %s, v26, %s, %s offen sc1" % (vJunk, sWS, sT[0]))
    p.e("s_mov_b64 exec, 1")
    p.e("buffer_load_dword %s, v26, %s, %s offen sc1" % (vJunk, sWS, sT[1]))
    p.e("s_mov_b64 exec, -1")

def pretouch_h(p, pr):
    if not OPT["pretouch"]: return
    p.e("v_and_b32 v26, 31, %s" % vLane); p.e("v_min_u32 v26, 27, v26"); p.e("v_lshlrev_b32 v26, 7, v26")
    p.e("v_lshrrev_b32 v27, 5, %s" % vLane)
    p.e("s_mov_b32 %s, 57344" % sT[1])
    p.e("v_mad_u32_u24 v26, v27, %s, v26" % sT[1])
    h_base(p, sT[0], pr)
    p.e("buffer_load_dword %s, v26, %s, %s offen sc1" % (vJunk, sWS, sT[0]))
def h_base(p, dst, pr):
    p.e("s_mul_i32 %s, %s, 114688" % (dst, sW)); p.e("s_mul_i32 %s, %s, 3584" % (sT[5], sM))
    p.e("s_add_u32 %s, %s, %s" % (dst, dst, sT[5])); p.e("s_add_u32 %s, %s, %s" % (dst, dst, sCl19))
    p.e("s_add_u32 %s, %s, %d" % (dst, dst, OFF_H[pr]))

def pretouch_flags(p):
    if not OPT["pretouch"]: return
    p.e("v_lshlrev_b32 v26, 15, %s" % vLane)
    p.e("s_lshl_b32 %s, %s, 11" % (sT[0], sC)); p.e("s_lshl_b32 %s, %s, 7" % (sT[1], sM))
    p.e("s_add_u32 %s, %s, %s" % (sT[0], sT[0], sT[1])); p.e("s_add_u32 %s, %s, %d" % (sT[0], sT[0], OFF_FLAG))
    p.e("s_mov_b64 exec, 0x7f")
    p.e("buffer_load_dword %s, v26, %s, %s offen sc1" % (vJunk, sWS, sT[0]))
    p.e("s_mov_b64 exec, -1")

exec(open(__file__.replace("gen.py", "phases.py")).read())

def build():
    p = Prog()
    st = {}
    st['wq'], st['dots1'], st['role'] = startup(p)
    seq = [("p1", 0), ("p2", 0), ("p3", 0), ("p4", 0), ("p1", 1), ("p2", 1), ("p3", 1), ("p4", 1)]
    for n, (ph, pr) in enumerate(seq):
        globals()[ph](p, pr, st)
        if n + 1 >= OPT["stop"]: break
    le, l2 = L(), L()
    p.e("Lfin:")
    if OPT["stamps"] or OPT["stop"] < 8: p.waitall()
    stamp(p, "end"); stamp(p, "R1")
    if OPT["stamps"]:
        p.e("v_lshlrev_b32 v30, 2, %s" % vLane)
        p.e("buffer_store_dword v0, v30, %s, %s offen" % (sWS, sStN))
        p.e("buffer_store_dword v24, v30, %s, %s offen offset:256" % (sWS, sStN))
    if OPT["stop"] < 8:
        p.maybe = "end"; epoch_update(p); p.maybe = False
    p.e("Lend:")
    p.e("s_endpgm")
    p.add(TAILCODE)
    p.e("Lcode_end:")
    return p

def main():
    p = build()
    ins, nn = finalize(p)
    if OPT.get('align', 1):
        import align
        print('align (promoted, still misaligned):', align.align(ins, '.set CODE_NL, 14'))
    n_i = sum(1 for i in ins if i.kind not in ("label", "dir"))
    est = n_i * 7
    hdr = open("cdna_kernels/%s.s.ref" % NAME).read().split("; Override launch")[0]
    out = [hdr.rstrip(), "; Generated by a hand-written python generator (persistent fused kernel).",
           "; @launch grid=(256,1,1) block=(256,1,1) lds=%d" % LDS_BYTES,
           '.amdgcn_target "amdgcn-amd-amdhsa--gfx950"', ".text", ".globl %s_kernel" % NAME, ".p2align 8",
           ".type %s_kernel,@function" % NAME, ".set CODE_NL, %d" % min(64, (n_i * 8 // 128) // 32 + 1), "%s_kernel:" % NAME]
    out += [i.text for i in ins]
    out += ['.section .rodata,"a"', ".p2align 6", ".amdhsa_kernel %s_kernel" % NAME,
            "  .amdhsa_next_free_vgpr 512", "  .amdhsa_next_free_sgpr 102", "  .amdhsa_accum_offset 256",
            "  .amdhsa_group_segment_fixed_size 0", "  .amdhsa_kernarg_size 80", "  .amdhsa_user_sgpr_count 2",
            "  .amdhsa_user_sgpr_kernarg_segment_ptr 1", "  .amdhsa_system_sgpr_workgroup_id_x 1",
            "  .amdhsa_float_denorm_mode_32 3", ".end_amdhsa_kernel", ""]
    open(sys.argv[1], "w").write("\n".join(out))
    open(sys.argv[1] + ".stamps", "w").write("\n".join(STAMPS))
    print("instructions: %d, hazard nops: %d forced bg: %d" % (n_i, nn, FORCED[0]))
main()
```

```python
import sys, math, struct
from asmlib import *

NAME = "interleave_layers__sliding_local_dilated__glu_gated_swiglu__prompt"
OPT = dict(stop=99, stamps=0, forceslow=0, pretouch=1, p1_gap1=72, at_n1=3, post4=3, p1_early1=6, p3_gap1=110, p3_gap0=64, p1_early0=14, at_n0=4, p4_gap=100, g1_bgs0=4, g1_bgs1=24, p3_xa=14, wfp=1, p1_gap0=70, wfl=9, spread=0, pt=7, hmod0=4, hmod1=4, outmod=1, mid_split=60, hf0=5, hf1=8, p3_x0=5, p4_x0=8, p2_x0=8, p1_x0=4)
for a in sys.argv[2:]:
    k_, v_ = a.split("="); OPT[k_] = int(v_, 0)

def f2u(x): return struct.unpack("<I", struct.pack("<f", x))[0]

OFF_EPOCH = 0; OFF_EG = 4096; OFF_HELLO = 0x2000; OFF_FLAG = 0x10000; OFF_HFLAG = 0x48000
OFF_WF1 = 0x50000; OFF_WF2 = 0x58000; OFF_STAMP = 0x60000
OFF_PWQ = 0x100000; OFF_PWO = 0x250000; OFF_PW13 = 0x2C0000; OFF_PW2 = 0x5D0000
OFF_CQ = 0x760000; OFF_C13 = 0x780000
ALIAS = OPT.get('alias', 1)
OFF_O = [0x800000, 0xC00000 if ALIAS else 0xA00000]; OFF_X1 = [0xC00000, 0x800000 if ALIAS else 0xE00000]; OFF_X2 = 0x800000 if ALIAS else 0x1000000
OFF_HALO = 0x1200000; OFF_H = [0x1400000, 0x1400000 if ALIAS else 0x1C00000]; WS_USED = 0x2400000
XST = 114688
HST = 14336
L_PWQ = 0; L_PWO = 86016; L_X = 151552; L_TAB = 159744
L_CQ = L_TAB; L_C13 = L_TAB + 512; L_MEAN = L_TAB + 1536; L_RSTD = L_TAB + 2176; L_HSP = L_TAB + 2816
L_TP = [[28672, 57344, 0, 86016, 114688, 28672, 57344], [0, 28672, 57344, 86016, 114688, 0, 28672]]
L_DUM = [L_TAB + 2048, L_TAB + 2048]; L_HP = 0; L_RED = 110592
L_ROLE = 49152; L_RES = L_X; L_R4 = L_ROLE + 16384; L_R1 = L_ROLE + 24576; L_HXP = [L_PWO, L_PWO + 49152]
def L_WQ(s): return 114688 + s * 6144 if s < 6 else (s - 6) * 6144
LDS_BYTES = 163840
sWS = "s[24:27]"; sX = "s[28:31]"; sOUT = "s[32:35]"; sRAW = "s[36:39]"; sRAW2 = "s[40:43]"
sC, sM, sW, sCB, sTH, sE, sEn, sEg, sFast, sIdle = ["s%d" % i for i in range(44, 54)]
sT = ["s%d" % i for i in range(54, 60)]
sCl17, sCl19, sBud, sXcc = "s60", "s61", "s62", "s63"
M_OWN = ["s[%d:%d]" % (64 + 2 * r, 65 + 2 * r) for r in range(4)]
M_PRV = ["s[%d:%d]" % (72 + 2 * r, 73 + 2 * r) for r in range(4)]
M_PR0 = ["s[%d:%d]" % (80 + 2 * r, 81 + 2 * r) for r in range(4)]
sPWQ, sPWO, sPW13, sPW2 = "s88", "s89", "s90", "s91"
sD0, sD1, sD2 = "s92", "s93", "s94"
sW7k, sW4k, sQs, sPWQ7, sQm, sKey, sPW137, sBG, sB2 = ["s%d" % i for i in range(4, 13)]
sWQr, sW3r, sW1r, sW2r, sWOr = "s[36:39]", "s[40:43]", "s[88:91]", "s[12:15]", "s[16:19]"
sRB = "s3"; sM3 = "s[20:21]"; sPoll = sFast; sF0, sF1 = "s22", "s23"
sN = ["s%d" % i for i in range(36, 44)]
sA0, sA1 = "s95", "s96"
sStamp = "s[98:99]"; sStN = "s97"
vLane, vL0, vL64, vL128, vNinf, vL15, vG = "v1", "v2", "v3", "v4", "v5", "v6", "v7"
RES = 8
vPoll, vPo, vTag, vWo = "v16", "v17", "v18", "v19"
vOnes = 20
vJunk = "v16"
vStat = "v25"
vT = ["v%d" % i for i in range(26, 32)]

def V(n, cnt=1): return "v%d" % n if cnt == 1 else "v[%d:%d]" % (n, n + cnt - 1)
def A(n, cnt=1): return "a%d" % n if cnt == 1 else "a[%d:%d]" % (n, n + cnt - 1)
def lds(addr):
    b = addr >> 16
    return (vL0, vL64, vL128)[b], addr & 0xFFFF
_lab = [0]
def L(p="L"):
    _lab[0] += 1; return "%s%d" % (p, _lab[0])

STAMPS = []
def stamp(p, name):
    if not OPT["stamps"]: return
    idx = len(STAMPS); STAMPS.append(name); assert idx < 128
    p.e("%s %s" % ("s_memrealtime" if name.startswith("R") else "s_memtime", sStamp))
    p.e("s_waitcnt lgkmcnt(0)")
    p.e("v_writelane_b32 v%d, s98, %d" % (0 if idx < 64 else 24, idx % 64))

def stamp3(p, name):
    if OPT['stamps'] >= 3: stamp(p, name)

def stamp2(p, name):
    if OPT['stamps'] >= 2: stamp(p, name)

def dma_linear(p, sbase, src_const, lds_addr, nfr, mods=""):
    per = nfr // 4; assert per * 4 == nfr
    toks = []
    p.e("s_mul_i32 %s, %s, %d" % (sD0, sW, per * 1024))
    p.e("s_add_u32 %s, %s, %s" % (sD1, sD0, sbase))
    for g0 in range(0, per, 4):
        p.e("s_add_u32 m0, %s, %d" % (sD0, lds_addr + g0 * 1024))
        p.e("s_add_u32 %s, %s, %d" % (sD2, sD1, src_const + g0 * 1024))
        for u in range(min(4, per - g0)):
            toks.append(p.e("buffer_load_dwordx4 %s, %s, %s offen offset:%d %s lds" % (vL0, sWS, sD2, u * 1024, mods)))
    return toks

def poll(p, soff, stag, voff, out=None, mid=None):
    lp, ld = L("Lp"), L("Ld")
    old = p.maybe; p.maybe = old or "poll"
    if mid:
        p.e("buffer_load_dword %s, %s, %s, %s offen sc1" % (vPoll, voff, sWS, soff))
        mid(p)
        p.e("s_waitcnt vmcnt(0)")
        p.e("v_cmp_ne_u32 vcc, %s, %s" % (stag, vPoll))
        p.e("s_cbranch_vccz %s" % (out or ld))
    p.e("%s:" % lp)
    p.e("buffer_load_dword %s, %s, %s, %s offen sc1" % (vPoll, voff, sWS, soff))
    p.e("s_waitcnt vmcnt(0)")
    p.e("v_cmp_ne_u32 vcc, %s, %s" % (stag, vPoll))
    p.e("s_cbranch_vccz %s" % (out or ld))
    p.e("s_sub_u32 %s, %s, 1" % (sBud, sBud))
    p.e("s_cbranch_scc0 %s" % lp)
    p.e("s_mov_b32 %s, 0" % sBud)
    p.e("%s:" % ld)
    p.maybe = old

def flag_store(p, soff, stag, sc1):
    p.e("v_mov_b32 %s, %s" % (vTag, stag))
    p.e("s_mov_b64 exec, 1")
    p.e("buffer_store_dword %s, off, %s, %s %s" % (vTag, sWS, soff, "sc1" if sc1 else ""))
    p.e("s_mov_b64 exec, -1")

def xgroup_reduce(p, regs, op, tmp):
    for perm in ("v_permlane16_swap_b32", "v_permlane32_swap_b32"):
        for r, t in zip(regs, tmp): p.e("v_mov_b32 %s, %s" % (t, r))
        for r, t in zip(regs, tmp): p.e("%s %s, %s" % (perm, r, t))
        for r, t in zip(regs, tmp): p.e("%s %s, %s, %s" % (op, r, r, t))

def finish_stats(p, s1, s2, nmean, rstd, tmp):
    p.e("v_mul_f32 %s, 0x%x, %s" % (nmean, f2u(-1.0 / 448), s1))
    p.e("v_mul_f32 %s, %s, %s" % (tmp, nmean, nmean))
    p.e("v_fma_f32 %s, %s, %s, -%s" % (tmp, s2, sInv448, tmp))
    p.e("v_max_f32 %s, 0, %s" % (tmp, tmp))
    p.e("v_add_f32 %s, 0x%x, %s" % (tmp, f2u(1e-5), tmp))
    p.e("v_rsq_f32 %s, %s" % (rstd, tmp))
sInv448 = "s100"; sH = "s101"
HEADMAP = [0, 7, 14, 5, 12, 3, 10, 2, 4, 6, 9, 1, 8, 15, 11, 13] if OPT.get("hmap", 1) else list(range(16))

def startup(p):
    p.e("s_cmp_ge_u32 s2, 256")
    p.e("s_cbranch_scc1 Lend")
    if OPT["stamps"]:
        p.e("s_memrealtime s[64:65]"); p.e("s_memtime s[66:67]")
    k1 = p.e("s_load_dwordx16 s[4:19], s[0:1], 0")
    k2 = p.e("s_load_dwordx4 s[20:23], s[0:1], 64")
    p.e("s_getpc_b64 s[36:37]")
    p.e("Lpc:")
    p.e("s_lshr_b32 %s, s2, 3" % sT[0])
    p.e("v_and_b32 %s, 63, v0" % vLane)
    p.e("v_lshrrev_b32 v26, 6, v0")
    p.e("s_mul_i32 %s, %s, CODE_NL" % (sT[1], sT[0]))
    p.e("v_min_u32 v27, CODE_NL-1, %s" % vLane)
    p.e("v_add_u32 v27, %s, v27" % sT[1])
    p.e("v_lshlrev_b32 v27, 7, v27")
    p.e("v_min_u32 v27, Lcode_end-Lpc-4, v27")
    p.e("v_readfirstlane_b32 %s, v26" % sW)
    p.e("global_load_dword %s, v27, s[36:37]" % vJunk)
    p.e("s_and_b32 %s, s2, 7" % sT[1])
    p.e("s_lshr_b32 %s, %s, 4" % (sC, sT[0]))
    p.e("s_lshl1_add_u32 %s, %s, %s" % (sC, sT[1], sC))
    p.e("s_and_b32 %s, %s, 15" % (sM, sT[0]))
    hk = sum(h << (4 * i) for i, h in enumerate(HEADMAP))
    p.e("s_mov_b32 s70, 0x%x" % (hk & 0xFFFFFFFF)); p.e("s_mov_b32 s71, 0x%x" % (hk >> 32))
    p.e("s_lshl_b32 %s, %s, 2" % (sT[1], sM)); p.e("s_lshr_b64 s[70:71], s[70:71], %s" % sT[1]); p.e("s_and_b32 %s, s70, 15" % sH)
    p.e("s_cmp_ge_u32 %s, 7" % sM)
    p.e("s_cselect_b32 %s, 1, 0" % sTH)
    p.e("s_cselect_b32 %s, 7, 0" % sT[1])
    p.e("s_sub_u32 %s, %s, %s" % (sCB, sM, sT[1]))
    p.e("s_cmp_ge_u32 %s, 14" % sM)
    p.e("s_cselect_b32 %s, 1, 0" % sIdle)
    p.e("s_cselect_b32 %s, 7, 0" % sT[1])
    p.e("s_sub_u32 %s, %s, %s" % (sCB, sCB, sT[1]))
    p.e("v_lshlrev_b32 %s, 4, %s" % (vL0, vLane))
    p.e("v_and_b32 %s, 15, %s" % (vL15, vLane))
    p.e("v_lshrrev_b32 %s, 4, %s" % (vG, vLane))
    p.e("v_lshrrev_b32 v28, 3, %s" % vLane)
    p.e("v_and_b32 v29, 7, %s" % vLane)
    p.e("v_lshlrev_b32 v29, 4, v29")
    p.wait(k1, k2)
    if OPT["stamps"]:
        p.e("s_memtime s[68:69]"); p.e("s_waitcnt lgkmcnt(0)")
    if OPT.get("wsbase", 0):
        p.e("s_add_u32 s22, s22, 0x%x" % (OPT["wsbase"] << 20)); p.e("s_addc_u32 s23, s23, 0")
    for srd, lo, size in ((24, 22, WS_USED), (28, 4, 1835008), (32, 18, 1835008)):
        p.e("s_mov_b32 s%d, s%d" % (srd, lo)); p.e("s_mov_b32 s%d, s%d" % (srd + 1, lo + 1))
        p.e("s_mov_b32 s%d, 0x%x" % (srd + 2, size)); p.e("s_mov_b32 s%d, 0x20000" % (srd + 3))
    def srd(n, lo, size):
        p.e("s_mov_b32 s%d, s%d" % (n, lo)); p.e("s_mov_b32 s%d, s%d" % (n + 1, lo + 1))
        p.e("s_mov_b32 s%d, %d" % (n + 2, size)); p.e("s_mov_b32 s%d, 0x20000" % (n + 3))
    srd(36, 6, 1204224)
    if OPT.get("xtouch", 1):
        p.e("s_lshl2_add_u32 %s, %s, %s" % (sT[0], sM, sW)); p.e("s_lshl_b32 %s, %s, 11" % (sT[0], sT[0]))
        p.e("s_mul_i32 %s, %s, 114688" % (sT[1], sC)); p.e("s_add_u32 %s, %s, %s" % (sT[0], sT[0], sT[1]))
        p.e("s_sub_u32 %s, %s, 14336" % (sT[1], sT[0])); p.e("s_cselect_b32 %s, %s, %s" % (sT[0], sT[0], sT[1]))
        p.e("v_lshlrev_b32 v30, 7, %s" % vL15)
        p.e("s_mov_b64 exec, 0xffff")
        p.e("buffer_load_dword %s, v30, %s, %s offen" % (vJunk, sX, sT[0]))
        p.e("s_mov_b64 exec, -1")
    p.e("s_lshl_b32 %s, %s, 7" % (sT[0], sC))
    p.e("s_lshl_b32 %s, %s, 5" % (sT[1], sW))
    p.e("s_add_u32 %s, %s, %s" % (sT[1], sT[1], sT[0]))
    p.e("s_mul_i32 %s, %s, 896" % (sA0, sT[1]))
    p.e("s_mul_i32 %s, %s, 28672" % (sA1, sW))
    p.e("v_and_b32 v25, 7, %s" % vLane)
    p.e("v_xor_b32 v25, v25, v28")
    p.e("v_lshlrev_b32 v25, 4, v25")
    p.e("s_movk_i32 %s, 896" % sT[2])
    p.e("v_mad_u32_u24 v25, v28, %s, v25" % sT[2])
    xd = []
    def xdma(i):
        rb, lc = i // 7, i % 7
        if lc == 0 and rb: p.e("s_add_u32 %s, %s, 7168" % (sA0, sA0))
        p.e("s_add_u32 m0, %s, %d" % (sA1, i * 1024 - lc * 128))
        xd.append(p.e("buffer_load_dwordx4 v25, %s, %s offen offset:%d lds" % (sX, sA0, lc * 128)))
    srd(40, 14, 1605632); srd(88, 12, 1605632); srd(12, 16, 1605632); srd(16, 8, 401408)
    def wtouch(lst, p=p):
        p.e("s_lshl2_add_u32 %s, s2, %s" % (sT[0], sW))
        p.e("v_lshlrev_b32 v30, 7, %s" % vLane)
        for sr, n in lst:
            p.e("s_mul_i32 %s, %s, %d" % (sT[1], sT[0], n * 128))
            p.e("s_mov_b64 exec, 0x%x" % ((1 << n) - 1))
            p.e("buffer_load_dword %s, v30, %s, %s offen" % (vJunk, sr, sT[1]))
        p.e("s_mov_b64 exec, -1")
    low = [(sW1r, 13), (sW3r, 13), (sWOr, 4), (sW2r, 13)]
    TM = OPT.get("tmode", 3)
    if TM in (1, 3): wtouch([(sWQr, 10)])
    if TM == 2: wtouch([(sWQr, 10)] + low)
    if OPT["stamps"]:
        p.e("s_lshl_b32 %s, s2, 2" % sStN); p.e("s_add_u32 %s, %s, %s" % (sStN, sStN, sW))
        p.e("s_lshl_b32 %s, %s, 9" % (sStN, sStN)); p.e("s_add_u32 %s, %s, %d" % (sStN, sStN, OFF_STAMP))
        for nm_, sr in (("entry", "s66"), ("R0", "s64"), ("S.karg", "s68")):
            idx = len(STAMPS); STAMPS.append(nm_)
            p.e("v_writelane_b32 v0, %s, %d" % (sr, idx))
    p.e("s_lshl_b32 %s, %s, 7" % (sT[0], sC))
    p.e("s_lshl_b32 %s, %s, 7" % (sT[1], sCB))
    p.e("s_add_u32 %s, %s, %d" % (sT[1], sT[1], OFF_EG))
    p.e("s_add_u32 %s, %s, 128" % (sT[2], sT[0]))
    e1 = p.e("s_load_dword %s, s[22:23], %s" % (sE, sT[0]))
    e2 = p.e("s_load_dword %s, s[22:23], %s" % (sEn, sT[2]))
    e3 = p.e("s_load_dword %s, s[22:23], %s" % (sEg, sT[1]))
    p.e("s_lshr_b32 %s, %s, 1" % (sT[0], sW)); p.e("s_mul_i32 %s, %s, 192" % (sT[1], sT[0]))
    p.e("s_mul_i32 %s, %s, 56" % (sT[2], sH)); p.e("s_movk_i32 %s, 2688" % sT[3]); p.e("s_movk_i32 %s, 896" % sT[4])
    for u in range(3):
        r = 244 + u
        p.e("v_add_u32 v26, %s, %s" % (sT[1], vLane))
        if u: p.e("v_add_u32 v26, %d, v26" % (64 * u))
        p.e("v_mul_u32_u24 v27, 5462, v26"); p.e("v_lshrrev_b32 v27, 16, v27")
        p.e("v_mul_u32_u24 v28, 12, v27"); p.e("v_sub_u32 v26, v26, v28")
        p.e("v_lshrrev_b32 v28, 2, v27"); p.e("v_lshrrev_b32 v29, 3, v27"); p.e("v_xor_b32 v28, v28, v29")
        p.e("v_and_b32 v28, 1, v28"); p.e("v_lshlrev_b32 v28, 1, v28"); p.e("v_xor_b32 v26, v26, v28")
        p.e("v_lshrrev_b32 v28, 2, v26"); p.e("v_and_b32 v26, 3, v26")
        p.e("v_lshl_add_u32 v26, v26, 4, %s" % sT[2])
        p.e("v_mad_u32_u24 v26, v28, %s, v26" % sT[4])
        p.e("v_mad_u32_u24 v%d, v27, %s, v26" % (r, sT[3]))
        if u: p.e("v_subrev_u32 v%d, %d, v%d" % (r, 1024 * u, r))
    p.e("s_and_b32 %s, %s, 1" % (sT[1], sW))
    p.e("s_mul_i32 %s, %s, 86016" % (sQs, sT[1]))
    p.e("s_mul_i32 %s, %s, 6144" % (sQm, sT[1])); p.e("s_mul_i32 %s, %s, 3072" % (sT[0], sT[0])); p.e("s_add_u32 %s, %s, %s" % (sQm, sQm, sT[0]))
    p.e("v_add_u32 %s, 0x10000, %s" % (vL64, vL0))
    p.e("v_add_u32 %s, 0x20000, %s" % (vL128, vL0))
    p.e("v_mov_b32 %s, 0xff800000" % vNinf)
    p.e("v_mov_b32 %s, 0" % vPo)
    for i in range(4): p.e("v_mov_b32 v%d, 0x3f803f80" % (vOnes + i))
    p.e("s_mov_b32 %s, 0x%x" % (sInv448, f2u(1.0 / 448)))
    p.e("s_lshl_b32 %s, %s, 17" % (sCl17, sC))
    p.e("s_lshl_b32 %s, %s, 19" % (sCl19, sC))
    p.e("s_mov_b32 %s, 60000" % sBud)
    p.e("s_mov_b32 s20, 0"); p.e("s_mov_b32 s21, 0xffff0000")
    for r in range(4):
        p.e("v_lshl_add_u32 v26, %s, 2, %d" % (vG, r))
        p.e("v_sub_u32 v27, %s, v26" % vL15)
        p.e("v_and_b32 v28, 1, v27")
        p.e("v_cmp_eq_u32 vcc, 0, v28")
        p.e("v_cmp_le_i32_e64 %s, 0, v27" % M_OWN[r])
        p.e("v_cmp_ge_i32_e64 %s, -2, v27" % M_PRV[r])
        p.e("s_and_b64 %s, %s, vcc" % (M_OWN[r], M_OWN[r]))
        p.e("s_and_b64 %s, %s, vcc" % (M_PRV[r], M_PRV[r]))
    p.e("s_or_b32 %s, %s, %s" % (sT[0], sC, sW))
    p.e("s_cmp_eq_u32 %s, 0" % sT[0])
    for r in range(4): p.e("s_cselect_b64 %s, 0, %s" % (M_PR0[r], M_PRV[r]))
    stamp(p, "S.const")
    p.wait(e1, e2, e3)
    for s in (sE, sEn, sEg):
        p.e("s_mul_i32 %s, %s, 0x9e3779b1" % (s, s)); p.e("s_add_u32 %s, %s, 0x7f4a7c15" % (s, s))
    lh = L()
    p.e("s_getreg_b32 %s, hwreg(HW_REG_XCC_ID)" % sXcc)
    p.e("s_and_b32 %s, %s, 15" % (sXcc, sXcc))
    p.e("s_andn2_b32 %s, %s, 15" % (sT[0], sE))
    p.e("s_or_b32 %s, %s, %s" % (sXcc, sXcc, sT[0]))
    p.e("s_mov_b32 %s, 2" % sFast)
    p.e("s_cmp_lg_u32 %s, 3" % sW); p.e("s_cbranch_scc1 %s" % lh)
    p.maybe = "h"
    p.e("s_lshl_b32 %s, %s, 11" % (sT[0], sC)); p.e("s_lshl_b32 %s, %s, 7" % (sT[1], sM))
    p.e("s_add_u32 %s, %s, %s" % (sT[0], sT[0], sT[1])); p.e("s_add_u32 %s, %s, %d" % (sT[0], sT[0], OFF_HELLO))
    flag_store(p, sT[0], sXcc, True)
    p.maybe = False
    p.e("%s:" % lh)
    p.e("v_and_b32 v80, 7, %s" % vLane)
    p.e("v_bfe_u32 v81, %s, 3, 1" % vLane)
    p.e("v_xor_b32 v82, %s, v80" % vG)
    p.e("v_lshlrev_b32 v82, 4, v82")
    p.e("v_lshl_add_u32 v82, v80, 7, v82")
    p.e("s_movk_i32 %s, 7168" % sT[2])
    p.e("v_mad_u32_u24 v82, v81, %s, v82" % sT[2])
    p.e("v_add_u32 v82, %s, v82" % sA1)
    p.e("v_xor_b32 v83, 64, v82")
    def dots(j):
        q = Prog()
        for i in range(56):
            reg = 128 + 56 * j + i
            q.e("v_dot2_f32_bf16 v%d, v%d, v%d, %s" % (96 + 2 * j, reg, vOnes, "0" if i == 0 else "v%d" % (96 + 2 * j)))
            q.e("v_dot2_f32_bf16 v%d, v%d, v%d, %s" % (97 + 2 * j, reg, reg, "0" if i == 0 else "v%d" % (97 + 2 * j)))
        return q.ins
    def xreads(j):
        return [p.e("ds_read_b128 %s, v%d offset:%d" % (V(128 + (j * 14 + s_) * 4, 4), 82 + (s_ & 1), j * 14336 + (s_ >> 1) * 1024)) for s_ in range(14)]
    bg = BGQ
    for i in range(28): xdma(i)
    wq = [rawq(p, 0)]
    stamp(p, "S.xiss")
    p.wait(xd[:14]); r0 = xreads(0)
    wq += [rawq_bg(bg, 1), rawq_bg(bg, 2)]
    if TM == 1:
        q = Prog(); wtouch(low, q); bg.append(Item(q.ins))
    if TM == 3:
        q = Prog(); wtouch([(sWOr, 4)], q); bg.append(Item(q.ins))
    bg.pt(p, 3)
    p.wait(r0)
    p.add(spr(dots(0), bg, OPT.get("tail_gap", 100)))
    while bg: bg.pt(p)
    p.wait(xd)
    stamp(p, "S.xin")
    xreads(1)
    p.e("v_lshrrev_b32 v28, 3, %s" % vLane)
    p.e("v_and_b32 v29, 7, %s" % vLane)
    p.e("v_lshrrev_b32 v26, 4, %s" % vLane); p.e("v_lshlrev_b32 v26, 1, v26"); p.e("v_xor_b32 v26, v26, v29")
    p.e("v_lshlrev_b32 v26, 4, v26"); p.e("s_movk_i32 %s, 896" % sT[2]); p.e("v_mad_u32_u24 %s, v28, %s, v26" % (vWo, sT[2]))
    p.e("v_lshlrev_b32 v29, 4, v29")
    p.e("v_mad_u32_u24 v127, v28, %s, v29" % sT[2])
    p.e("s_movk_i32 %s, 3584" % sT[2]); p.e("v_mad_u32_u24 v126, v28, %s, v29" % sT[2])
    p.e("s_mul_i32 %s, %s, 224" % (sRB, sM)); p.e("s_mul_i32 %s, %s, 114688" % (sT[1], sC)); p.e("s_add_u32 %s, %s, %s" % (sRB, sRB, sT[1]))
    p.e("s_add_u32 %s, %s, %s" % (sRB, sRB, sA1))
    p.e("s_lshl1_add_u32 s22, %s, %s" % (sC, sTH)); p.e("s_mul_i32 s22, s22, 57344")
    p.e("s_lshl_b32 %s, %s, 7" % (sT[1], sCB)); p.e("s_add_u32 s22, s22, %s" % sT[1])
    p.e("s_mul_i32 %s, %s, 7168" % (sT[1], sW)); p.e("s_add_u32 s22, s22, %s" % sT[1])
    p.e("s_cmp_lg_u32 %s, 0" % sIdle); p.e("s_cselect_b32 s22, 0x40000000, s22")
    p.e("s_cmp_ge_u32 %s, 14" % sC); p.e("s_cselect_b32 s22, 0x40000000, s22"); p.e("s_cselect_b32 %s, 0x40000000, %s" % (sRB, sRB))
    p.e("s_lshl_b32 s23, %s, 10" % sW)
    p.e("s_mul_i32 s9, %s, 86016" % sC); p.e("s_mul_i32 %s, %s, 21504" % (sT[1], sW)); p.e("s_add_u32 s9, s9, %s" % sT[1])
    p.e("s_cmp_ge_u32 %s, 14" % sC); p.e("s_cselect_b32 s9, 0x40000000, s9")
    p.e("v_lshrrev_b32 v26, 2, %s" % vL15); p.e("v_and_b32 v27, 3, %s" % vLane); p.e("s_movk_i32 %s, 896" % sT[2])
    p.e("v_mul_u32_u24 v247, 2688, %s" % vG); p.e("v_lshl_add_u32 v247, v27, 4, v247"); p.e("v_mad_u32_u24 v247, v26, %s, v247" % sT[2])
    p.e("s_mul_i32 %s, %s, 56" % (sT[0], sH)); p.e("v_add_u32 v247, %s, v247" % sT[0])
    p.e("v_cmp_eq_u32 vcc, 3, v26"); p.e("v_bfrev_b32 v31, 1"); p.e("v_cndmask_b32 v247, v247, v31, vcc")
    p.waitall(vm=False)
    p.e("s_barrier")
    role = []
    for half in range(2):
        for mat, sr in enumerate((sW1r, sW3r)):
            q = Prog()
            q.e("s_add_u32 m0, s23, %d" % (L_ROLE + half * 8192 + mat * 4096 - half * 128))
            q.e("buffer_load_dwordx4 v126, %s, %s offen offset:%d nt lds" % (sr, sRB, half * 128))
            role.append(Item(q.ins))
    for u in range(2):
        q = Prog()
        q.e("s_add_u32 m0, s23, %d" % (L_R4 + u * 4096))
        if u: q.e("s_add_u32 s22, s22, 28672")
        q.e("buffer_load_dwordx4 v127, %s, s22 offen nt lds" % sW2r)
        role.append(Item(q.ins))
    for u in range(2):
        q = Prog()
        q.e("s_lshl_b32 %s, s23, 1" % sBG); q.e("s_add_u32 m0, %s, %d" % (sBG, L_R1 + u * 1024))
        if u: q.e("s_add_u32 s9, s9, 10752")
        q.e("buffer_load_dwordx4 v247, %s, s9 offen lds" % sWQr)
        role.append(Item(q.ins))
    pp_ = p; p = Prog()
    p.e("s_mul_i32 %s, %s, 86016" % (sPWQ, sM)); p.e("s_add_u32 %s, %s, %d" % (sPWQ, sPWQ, OFF_PWQ))
    p.e("s_mul_i32 %s, %s, 200704" % (sPW13, sM)); p.e("s_add_u32 %s, %s, %d" % (sPW13, sPW13, OFF_PW13))
    p.e("s_mul_i32 %s, %s, 229376" % (sPW2, sCB)); p.e("s_mul_i32 %s, %s, 57344" % (sT[0], sW))
    p.e("s_add_u32 %s, %s, %s" % (sPW2, sPW2, sT[0])); p.e("s_add_u32 %s, %s, %d" % (sPW2, sPW2, OFF_PW2))
    p.e("s_mul_i32 %s, %s, 7168" % (sW7k, sW)); p.e("s_lshl_b32 %s, %s, 12" % (sW4k, sW))
    p.e("s_add_u32 %s, %s, %s" % (sPWQ7, sPWQ, sW7k)); p.e("s_add_u32 %s, %s, %s" % (sPW137, sPW13, sW7k))
    p.e("s_mul_i32 %s, %s, 25088" % (sPWO, sW)); p.e("s_lshl_b32 %s, %s, 7" % (sT[0], sCB)); p.e("s_add_u32 %s, %s, %s" % (sPWO, sPWO, sT[0]))
    p.e("s_cmp_lg_u32 %s, 0" % sIdle)
    p.e("s_cselect_b32 %s, 0x40000000, %s" % (sPWO, sPWO)); p.e("s_cselect_b32 %s, 0x40000000, %s" % (sPW2, sPW2))
    role.append(Item(p.ins)); p = pp_
    stamp(p, "S.role2")
    return wq, dots(1), role

def rawq_bg(bg, ch):
    q = Prog(); t = rawq(q, ch)
    bg.append(Item(q.ins[:3]))
    for k in (3, 4):
        it = Item([q.ins[k]]); it.cont = True; bg.append(it)
    return t

def rawq(p, ch):
    p.e("s_add_u32 m0, %s, %d" % (sQm, L_WQ(2 * ch)))
    p.e("s_add_u32 %s, %s, %d" % (sBG, sQs, ch * 172032))
    return [p.e("buffer_load_dwordx4 v%d, %s, %s offen offset:%d lds" % (244 + u, sWQr, sBG, u * 1024)) for u in range(3)]

def repack(p):
    sa, sb, sc_, sd, se, sf = "s40", "s41", "s42", "s43", "s22", "s23"
    p.e("v_lshrrev_b32 v26, 2, %s" % vL15)
    p.e("v_and_b32 v27, 3, %s" % vLane)
    p.e("v_lshlrev_b32 v27, 3, v27")
    p.e("v_lshrrev_b32 v30, 1, %s" % vG)
    p.e("v_and_b32 v29, 1, %s" % vG)
    p.e("v_lshl_add_u32 v28, v30, 2, v26")
    p.e("v_lshl_add_u32 v28, v28, 7, v27")
    p.e("v_lshl_add_u32 v28, v29, 12, v28")
    p.e("s_lshr_b32 %s, %s, 1" % (sT[0], sW)); p.e("s_and_b32 %s, %s, 1" % (sT[1], sW)); p.e("s_lshl_b32 %s, %s, 6" % (sT[1], sT[1]))
    p.e("s_lshl_b32 %s, %s, 13" % (sT[2], sT[0])); p.e("s_add_u32 %s, %s, %s" % (sT[2], sT[2], sT[1])); p.e("s_add_u32 %s, %s, %d" % (sT[2], sT[2], L_ROLE))
    p.e("v_add_u32 v28, %s, v28" % sT[2])
    for i in range(2):
        for pp in range(2):
            f = 32 + (i * 2 + pp) * 4
            p.e("ds_read_b64_tr_b16 %s, v28 offset:%d" % (A(f, 2), pp * 1024 + i * 32))
            p.e("ds_read_b64_tr_b16 %s, v28 offset:%d" % (A(f + 2, 2), pp * 1024 + i * 32 + 2048))
    p.e("v_lshl_add_u32 v30, v30, 4, v26")
    p.e("v_lshl_add_u32 v30, v29, 2, v30")
    p.e("v_lshl_add_u32 v30, v30, 7, v27")
    p.e("s_lshl_b32 %s, %s, 12" % (sT[2], sT[0])); p.e("s_add_u32 %s, %s, %s" % (sT[2], sT[2], sT[1])); p.e("s_add_u32 %s, %s, %d" % (sT[2], sT[2], L_R4))
    p.e("v_add_u32 v30, %s, v30" % sT[2])
    for t in range(2):
        p.e("ds_read_b64_tr_b16 %s, v30 offset:%d" % (A(48 + 4 * t, 2), t * 32))
        p.e("ds_read_b64_tr_b16 %s, v30 offset:%d" % (A(50 + 4 * t, 2), t * 32 + 1024))
    p.e("v_lshl_add_u32 v31, %s, 3, v26" % vG); p.e("v_lshl_add_u32 v31, v31, 8, v27")
    p.e("s_lshl_b32 %s, %s, 6" % (sT[2], sW)); p.e("s_add_u32 %s, %s, %d" % (sT[2], sT[2], L_R1)); p.e("v_add_u32 v31, %s, v31" % sT[2])
    for t in range(2):
        p.e("ds_read_b64_tr_b16 %s, v31 offset:%d" % (A(56 + 4 * t, 2), t * 32))
        p.e("ds_read_b64_tr_b16 %s, v31 offset:%d" % (A(58 + 4 * t, 2), t * 32 + 1024))
    p.e("s_mul_i32 %s, %s, 6144" % (se, sC)); p.e("s_lshl_b32 %s, %s, 11" % (sT[1], sW)); p.e("s_add_u32 %s, %s, %s" % (se, se, sT[1]))
    p.e("s_add_u32 %s, %s, %s" % (se, se, sPWQ))
    p.e("s_mul_i32 %s, %s, 57344" % (sa, sW)); p.e("s_add_u32 %s, %s, %s" % (sa, sa, sPW13))
    p.e("s_lshl_b32 %s, %s, 11" % (sT[1], sC)); p.e("s_add_u32 %s, %s, %s" % (sa, sa, sT[1]))
    p.e("s_add_u32 %s, %s, 28672" % (sb, sa))
    p.e("s_mul_i32 %s, %s, 14" % (sc_, sM)); p.e("s_add_u32 %s, %s, %s" % (sc_, sc_, sC))
    p.e("s_mul_i32 %s, %s, 896" % (sc_, sc_))
    p.e("s_lshl_b32 %s, %s, 8" % (sT[1], sW))
    p.e("s_add_u32 %s, %s, %s" % (sc_, sc_, sT[1])); p.e("s_add_u32 %s, %s, %d" % (sc_, sc_, OFF_C13))
    p.e("s_add_u32 %s, %s, 128" % (sf, sc_))
    p.e("s_lshl1_add_u32 %s, %s, %s" % (sd, sC, sTH)); p.e("s_lshl_b32 %s, %s, 13" % (sd, sd))
    p.e("s_mul_i32 %s, %s, 229376" % (sT[1], sCB)); p.e("s_add_u32 %s, %s, %s" % (sd, sd, sT[1]))
    p.e("s_lshl_b32 %s, %s, 11" % (sT[1], sW)); p.e("s_add_u32 %s, %s, %s" % (sd, sd, sT[1])); p.e("s_add_u32 %s, %s, %d" % (sd, sd, OFF_PW2))
    p.e("s_cmp_ge_u32 %s, 14" % sC)
    for r_ in (sa, sb, sc_, sd, se, sf): p.e("s_cselect_b32 %s, 0x40000000, %s" % (r_, r_))
    p.e("s_cmp_eq_u32 %s, 3" % sW)
    for r_ in (sb, se, sf): p.e("s_cselect_b32 %s, 0x40000000, %s" % (r_, r_))
    p.e("s_cmp_ge_u32 %s, 14" % sM); p.e("s_cselect_b32 %s, 0x40000000, %s" % (sd, sd))
    p.e("v_lshlrev_b32 v127, 2, %s" % vLane)
    p.waitall(vm=False)
    for i in range(2):
        p.e("v_mfma_f32_32x32x16_bf16 %s, %s, %s, 0" % (A(64 + 16 * i, 16), V(vOnes, 4), A(32 + 8 * i, 4)))
        p.e("v_mfma_f32_32x32x16_bf16 %s, %s, %s, %s" % (A(64 + 16 * i, 16), V(vOnes, 4), A(36 + 8 * i, 4), A(64 + 16 * i, 16)))
    items = []
    for r0, so in ((32, sa), (40, sb), (48, sd), (56, se)):
        for k in range(2):
            q = Prog(); q.e("buffer_store_dwordx4 %s, %s, %s, %s offen offset:%d sc1" % (A(r0 + 4 * k, 4), vL0, sWS, so, k * 1024)); items.append(Item(q.ins))
    q = Prog()
    q.e("s_mov_b32 exec_hi, 0")
    q.e("buffer_store_dword a64, v127, %s, %s offen sc1" % (sWS, sc_))
    q.e("buffer_store_dword a80, v127, %s, %s offen sc1" % (sWS, sf))
    q.e("s_mov_b32 exec_hi, -1")
    items.append(Item(q.ins))
    return items

def wf_flag(p):
    lw = L()
    p.e("s_cmp_lg_u32 %s, 3" % sW); p.e("s_cbranch_scc1 %s" % lw)
    p.maybe = "w3"
    p.e("s_lshl_b32 %s, %s, 11" % (sT[0], sM)); p.e("s_lshl_b32 %s, %s, 7" % (sT[1], sC))
    p.e("s_add_u32 %s, %s, %s" % (sT[0], sT[0], sT[1])); p.e("s_add_u32 %s, %s, %d" % (sT[0], sT[0], OFF_WF2))
    flag_store(p, sT[0], sEg, True)
    p.maybe = False
    p.e("%s:" % lw)

def wf_poll(p):
    lw = L()
    p.e("s_cmp_lg_u32 %s, 3" % sW); p.e("s_cbranch_scc1 %s" % lw)
    p.maybe = "w3"
    p.e("v_mul_u32_u24 v30, 7, %s" % vG); p.e("v_add_u32 v30, %s, v30" % sCB); p.e("v_mov_b32 v31, %s" % sCB)
    p.e("v_cmp_gt_u32 vcc, 16, v30"); p.e("v_cndmask_b32 v30, v31, v30, vcc")
    p.e("v_lshlrev_b32 v30, 11, v30"); p.e("v_lshl_add_u32 v31, %s, 7, v30" % vL15)
    p.e("s_mov_b32 %s, %d" % (sT[0], OFF_WF2))
    poll(p, sT[0], sEg, "v31")
    p.maybe = False
    p.e("%s:" % lw)

def halo_dma0(bg):
    p = Prog(); n0 = 0
    p.e("s_lshl_b32 %s, %s, 7" % (sD0, sC))
    p.e("s_sub_u32 %s, %s, 16" % (sD1, sD0)); p.e("s_mul_i32 %s, %s, 896" % (sD1, sD1))
    halo_s0(p, sD2); p.e("s_lshl_b32 %s, %s, 6" % (sA1, sD2)); p.e("s_add_u32 %s, %s, %s" % (sD1, sD1, sA1))
    p.e("s_cmp_eq_u32 %s, 0" % sC); p.e("s_cselect_b32 %s, 0x40000000, %s" % (sD1, sD1))
    p.e("s_lshl_b32 %s, %s, 10" % (sD2, sD2))
    p.e("v_mul_u32_u24 v123, 896, %s" % vL15); p.e("v_lshl_add_u32 v123, %s, 4, v123" % vG)
    for u in range(4):
        p.e("s_add_u32 m0, %s, %d" % (sD2, L_HXP[0] + u * 1024 - u * 64))
        p.e("buffer_load_dwordx4 v123, %s, %s offen offset:%d lds" % (sX, sD1, u * 64))
    p.e("s_lshl_b32 %s, %s, 6" % (sD1, sTH)); p.e("s_add_u32 %s, %s, %s" % (sD1, sD1, sD0))
    p.e("s_lshl_b32 %s, %s, 4" % (sD2, sW)); p.e("s_add_u32 %s, %s, %s" % (sD1, sD1, sD2))
    p.e("s_mul_i32 %s, %s, 896" % (sD1, sD1)); p.e("s_lshl_b32 %s, %s, 7" % (sD2, sCB)); p.e("s_add_u32 %s, %s, %s" % (sD1, sD1, sD2))
    p.e("s_lshl_b32 %s, %s, 11" % (sA1, sW))
    for rb in range(2):
        if rb: p.e("s_add_u32 %s, %s, 7168" % (sD1, sD1))
        p.e("s_add_u32 m0, %s, %d" % (sA1, L_RES + rb * 1024))
        p.e("buffer_load_dwordx4 v25, %s, %s offen lds" % (sX, sD1))
    cur = Item()
    for i in p.ins:
        cur.append(i)
        if i.tok: bg.append(cur); cur = Item()
    return [i.tok for i in p.ins if i.tok]

def halo_finish0(p, hd):
    HQ = 80
    halo_s0(p, sT[0]); p.e("s_lshl_b32 %s, %s, 10" % (sT[0], sT[0])); p.e("s_add_u32 %s, %s, %d" % (sT[0], sT[0], L_HXP[0]))
    p.e("v_add_u32 v26, %s, %s" % (sT[0], vL0))
    p.e("v_lshrrev_b32 v27, 1, %s" % vG)
    p.e("v_and_b32 v28, 7, %s" % vLane); p.e("v_xor_b32 v27, v27, v28")
    p.e("v_lshlrev_b32 v27, 4, v27")
    p.e("v_lshl_add_u32 v27, %s, 7, v27" % vL15)
    p.e("v_and_b32 v28, 1, %s" % vG)
    p.e("v_lshl_add_u32 v27, v28, 3, v27")
    p.e("s_lshl_b32 %s, %s, 11" % (sT[3], sW)); p.e("s_add_u32 %s, %s, %d" % (sT[3], sT[3], L_RES))
    p.e("v_add_u32 v27, %s, v27" % sT[3])
    for t in range(1, 4): p.e("v_xor_b32 v%d, %d, v27" % (27 + t, 32 * t))
    p.e("v_lshlrev_b32 %s, 11, %s" % (vStat, vG))
    p.e("v_lshl_add_u32 %s, %s, 3, %s" % (vStat, vL15, vStat))
    p.wait(hd)
    rd = [p.e("ds_read_b128 %s, v26 offset:%d" % (V(HQ + 4 * u, 4), u * 1024)) for u in range(4)]
    rd += [p.e("ds_read_b64 %s, v%d" % (V(RES + 2 * t, 2), 27 + t)) for t in range(4)]
    p.e("s_cmp_eq_u32 %s, 3" % sW); p.e("s_cselect_b64 vcc, -1, 0")
    p.wait(rd)
    for i in range(8): p.e("v_cndmask_b32_e64 v%d, v%d, 0, vcc" % (HQ + i, HQ + i))
    for i in range(16):
        p.e("v_dot2_f32_bf16 v100, v%d, v%d, %s" % (HQ + i, vOnes, "0" if i == 0 else "v100"))
        p.e("v_dot2_f32_bf16 v101, v%d, v%d, %s" % (HQ + i, HQ + i, "0" if i == 0 else "v101"))
    xgroup_reduce(p, ["v100", "v101"], "v_add_f32", ["v106", "v107"])
    p.e("s_lshl_b32 %s, %s, 7" % (sT[0], sW)); p.e("s_add_u32 %s, %s, %d" % (sT[0], sT[0], L_HSP))
    p.e("v_lshl_add_u32 v26, %s, 3, %s" % (vL15, sT[0]))
    t = p.e("ds_write_b64 v26, v[100:101]")
    return t

def sT896(p):
    p.e("s_movk_i32 %s, 896" % sT[2]); return sT[2]
def halo_s0(p, dst):
    p.e("s_lshl_b32 %s, %s, 2" % (dst, sW))
    p.e("s_min_u32 %s, %s, 10" % (dst, dst))

def pretouch_o(p, pr):
    if not OPT["pretouch"]: return
    p.e("v_and_b32 v26, 7, %s" % vLane); p.e("v_lshlrev_b32 v26, 7, v26")
    p.e("v_bfe_u32 v27, %s, 3, 1" % vLane); p.e("v_lshl_add_u32 v26, v27, 14, v26")
    p.e("s_lshl_b32 %s, %s, 15" % (sT[0], sW)); p.e("s_lshl_b32 %s, %s, 10" % (sT[1], sM))
    p.e("s_add_u32 %s, %s, %s" % (sT[0], sT[0], sT[1])); p.e("s_add_u32 %s, %s, %s" % (sT[0], sT[0], sCl17))
    p.e("s_add_u32 %s, %s, %d" % (sT[0], sT[0], OFF_O[pr]))
    p.e("s_mov_b64 exec, 0xffff")
    p.e("buffer_load_dword %s, v26, %s, %s offen sc1" % (vJunk, sWS, sT[0]))
    p.e("s_mov_b64 exec, -1")

def xtile_base(p, dst, off):
    p.e("s_lshl_b32 %s, %s, 2" % (dst, sTH)); p.e("s_add_u32 %s, %s, %s" % (dst, dst, sW))
    p.e("s_mul_i32 %s, %s, 14336" % (dst, dst))
    p.e("s_lshl_b32 %s, %s, 11" % (sT[5], sCB)); p.e("s_add_u32 %s, %s, %s" % (dst, dst, sT[5]))
    p.e("s_add_u32 %s, %s, %s" % (dst, dst, sCl17)); p.e("s_add_u32 %s, %s, %d" % (dst, dst, off))
def xstat_base(p, dst, off):
    p.e("s_lshl_b32 %s, %s, 2" % (dst, sTH)); p.e("s_add_u32 %s, %s, %s" % (dst, dst, sW))
    p.e("s_lshl_b32 %s, %s, 7" % (dst, dst))
    p.e("s_lshl_b32 %s, %s, 10" % (sT[5], sCB)); p.e("s_add_u32 %s, %s, %s" % (dst, dst, sT[5]))
    p.e("s_add_u32 %s, %s, %s" % (dst, dst, sCl17)); p.e("s_add_u32 %s, %s, %d" % (dst, dst, off + XST))

def pretouch_x(p, off):
    if not OPT["pretouch"]: return
    xtile_base(p, sT[0], off); xstat_base(p, sT[1], off)
    p.e("v_lshlrev_b32 v26, 7, %s" % vLane)
    p.e("s_mov_b64 exec, 0xffff")
    p.e("buffer_load_dword %s, v26, %s, %s offen sc1" % (vJunk, sWS, sT[0]))
    p.e("s_mov_b64 exec, 1")
    p.e("buffer_load_dword %s, v26, %s, %s offen sc1" % (vJunk, sWS, sT[1]))
    p.e("s_mov_b64 exec, -1")

def pretouch_h(p, pr):
    if not OPT["pretouch"]: return
    p.e("v_and_b32 v26, 31, %s" % vLane); p.e("v_min_u32 v26, 27, v26"); p.e("v_lshlrev_b32 v26, 7, v26")
    p.e("v_lshrrev_b32 v27, 5, %s" % vLane)
    p.e("s_mov_b32 %s, 57344" % sT[1])
    p.e("v_mad_u32_u24 v26, v27, %s, v26" % sT[1])
    h_base(p, sT[0], pr)
    p.e("buffer_load_dword %s, v26, %s, %s offen sc1" % (vJunk, sWS, sT[0]))
def h_base(p, dst, pr):
    p.e("s_mul_i32 %s, %s, 114688" % (dst, sW)); p.e("s_mul_i32 %s, %s, 3584" % (sT[5], sM))
    p.e("s_add_u32 %s, %s, %s" % (dst, dst, sT[5])); p.e("s_add_u32 %s, %s, %s" % (dst, dst, sCl19))
    p.e("s_add_u32 %s, %s, %d" % (dst, dst, OFF_H[pr]))

def pretouch_lin(p):
    p.e("s_cmp_eq_u32 %s, 11" % sM); p.e("s_cselect_b32 %s, 7, %s" % (sP0, sM))
    p.e("s_lshl2_add_u32 %s, %s, %s" % (sP1, sP0, sW)); p.e("s_and_b32 %s, %s, 15" % (sP2, sP1)); p.e("s_lshl_b32 %s, %s, 13" % (sP2, sP2))
    p.e("s_lshr_b32 %s, %s, 4" % (sP1, sP1)); p.e("s_mul_i32 %s, %s, %d" % (sP1, sP1, OFF_X1[0] - OFF_O[0]))
    p.e("s_add_u32 %s, %s, %s" % (sP1, sP1, sP2)); p.e("s_add_u32 %s, %s, %s" % (sP1, sP1, sCl17)); p.e("s_add_u32 %s, %s, %d" % (sP1, sP1, OFF_O[0]))
    p.e("s_cmp_eq_u32 %s, 7" % sM); p.e("s_cselect_b32 %s, 9, %s" % (sP0, sP0))
    p.e("s_cmp_ge_u32 %s, 8" % sP0); p.e("s_cselect_b32 %s, 0x40000000, %s" % (sP1, sP1))
    p.e("v_lshlrev_b32 v30, 7, %s" % vLane)
    p.e("buffer_load_dword %s, v30, %s, %s offen sc1" % (vJunk, sWS, sP1))

def pretouch_flags(p):
    if not OPT["pretouch"]: return
    p.e("v_lshlrev_b32 v26, 15, %s" % vLane)
    p.e("s_lshl_b32 %s, %s, 11" % (sT[0], sC)); p.e("s_lshl_b32 %s, %s, 7" % (sT[1], sM))
    p.e("s_add_u32 %s, %s, %s" % (sT[0], sT[0], sT[1])); p.e("s_add_u32 %s, %s, %d" % (sT[0], sT[0], OFF_FLAG))
    p.e("s_mov_b64 exec, 0x7f")
    p.e("buffer_load_dword %s, v26, %s, %s offen sc1" % (vJunk, sWS, sT[0]))
    p.e("s_mov_b64 exec, -1")

exec(open(__file__.replace("gen.py", "phases.py")).read())

def build():
    p = Prog()
    st = {}
    st['wq'], st['dots1'], st['role'] = startup(p)
    seq = [("p1", 0), ("p2", 0), ("p3", 0), ("p4", 0), ("p1", 1), ("p2", 1), ("p3", 1), ("p4", 1)]
    for n, (ph, pr) in enumerate(seq):
        globals()[ph](p, pr, st)
        if n + 1 >= OPT["stop"]: break
    le, l2 = L(), L()
    p.e("Lfin:")
    if OPT["stamps"] or OPT["stop"] < 8: p.waitall()
    stamp(p, "end"); stamp(p, "R1")
    if OPT["stamps"]:
        p.e("v_lshlrev_b32 v30, 2, %s" % vLane)
        p.e("buffer_store_dword v0, v30, %s, %s offen" % (sWS, sStN))
        p.e("buffer_store_dword v24, v30, %s, %s offen offset:256" % (sWS, sStN))
    if OPT["stop"] < 8:
        p.maybe = "end"; epoch_update(p); p.maybe = False
    p.e("Lend:")
    p.e("s_endpgm")
    p.add(TAILCODE)
    p.e("Lcode_end:")
    return p

def main():
    p = build()
    ins, nn = finalize(p)
    if OPT.get('align', 1):
        import align
        print('align (promoted, still misaligned):', align.align(ins, '.set CODE_NL, 14'))
    n_i = sum(1 for i in ins if i.kind not in ("label", "dir"))
    est = n_i * 7
    hdr = open("cdna_kernels/%s.s.ref" % NAME).read().split("; Override launch")[0]
    out = [hdr.rstrip(), "; Generated by a hand-written python generator (persistent fused kernel).",
           "; @launch grid=(256,1,1) block=(256,1,1) lds=%d" % LDS_BYTES,
           '.amdgcn_target "amdgcn-amd-amdhsa--gfx950"', ".text", ".globl %s_kernel" % NAME, ".p2align 8",
           ".type %s_kernel,@function" % NAME, ".set CODE_NL, %d" % min(64, (n_i * 8 // 128) // 32 + 1), "%s_kernel:" % NAME]
    out += [i.text for i in ins]
    out += ['.section .rodata,"a"', ".p2align 6", ".amdhsa_kernel %s_kernel" % NAME,
            "  .amdhsa_next_free_vgpr 512", "  .amdhsa_next_free_sgpr 102", "  .amdhsa_accum_offset 256",
            "  .amdhsa_group_segment_fixed_size 0", "  .amdhsa_kernarg_size 80", "  .amdhsa_user_sgpr_count 2",
            "  .amdhsa_user_sgpr_kernarg_segment_ptr 1", "  .amdhsa_system_sgpr_workgroup_id_x 1",
            "  .amdhsa_float_denorm_mode_32 3", ".end_amdhsa_kernel", ""]
    open(sys.argv[1], "w").write("\n".join(out))
    open(sys.argv[1] + ".stamps", "w").write("\n".join(STAMPS))
    print("instructions: %d, hazard nops: %d forced bg: %d" % (n_i, nn, FORCED[0]))
main()
```

```python
import sys, math, struct
from asmlib import *

NAME = "interleave_layers__sliding_local_dilated__glu_gated_swiglu__prompt"
OPT = dict(stop=99, stamps=0, forceslow=0, pretouch=1, p1_gap1=72, at_n1=3, post4=3, p1_early1=6, p3_gap1=110, p3_gap0=64, p1_early0=14, at_n0=4, p4_gap=100, g1_bgs0=4, g1_bgs1=24, p3_xa=14, wfp=1, p1_gap0=70, wfl=9, spread=0, pt=7, hmod0=4, hmod1=4, outmod=1, mid_split=60, hf0=5, hf1=8, p3_x0=5, p4_x0=8, p2_x0=8, p1_x0=4)
for a in sys.argv[2:]:
    k_, v_ = a.split("="); OPT[k_] = int(v_, 0)

def f2u(x): return struct.unpack("<I", struct.pack("<f", x))[0]

OFF_EPOCH = 0; OFF_EG = 4096; OFF_HELLO = 0x2000; OFF_FLAG = 0x10000; OFF_HFLAG = 0x48000
OFF_WF1 = 0x50000; OFF_WF2 = 0x58000; OFF_STAMP = 0x60000
OFF_PWQ = 0x100000; OFF_PWO = 0x250000; OFF_PW13 = 0x2C0000; OFF_PW2 = 0x5D0000
OFF_CQ = 0x760000; OFF_C13 = 0x780000
ALIAS = OPT.get('alias', 1)
OFF_O = [0x800000, 0xC00000 if ALIAS else 0xA00000]; OFF_X1 = [0xC00000, 0x800000 if ALIAS else 0xE00000]; OFF_X2 = 0x800000 if ALIAS else 0x1000000
OFF_HALO = 0x1200000; OFF_H = [0x1400000, 0x1400000 if ALIAS else 0x1C00000]; WS_USED = 0x2400000
XST = 114688
HST = 14336
L_PWQ = 0; L_PWO = 86016; L_X = 151552; L_TAB = 159744
L_CQ = L_TAB; L_C13 = L_TAB + 512; L_MEAN = L_TAB + 1536; L_RSTD = L_TAB + 2176; L_HSP = L_TAB + 2816
L_TP = [[28672, 57344, 0, 86016, 114688, 28672, 57344], [0, 28672, 57344, 86016, 114688, 0, 28672]]
L_DUM = [L_TAB + 2048, L_TAB + 2048]; L_HP = 0; L_RED = 110592
L_ROLE = 49152; L_RES = L_X; L_R4 = L_ROLE + 16384; L_R1 = L_ROLE + 24576; L_HXP = [L_PWO, L_PWO + 49152]
def L_WQ(s): return 114688 + s * 6144 if s < 6 else (s - 6) * 6144
LDS_BYTES = 163840
sWS = "s[24:27]"; sX = "s[28:31]"; sOUT = "s[32:35]"; sRAW = "s[36:39]"; sRAW2 = "s[40:43]"
sC, sM, sW, sCB, sTH, sE, sEn, sEg, sFast, sIdle = ["s%d" % i for i in range(44, 54)]
sT = ["s%d" % i for i in range(54, 60)]
sCl17, sCl19, sBud, sXcc = "s60", "s61", "s62", "s63"
M_OWN = ["s[%d:%d]" % (64 + 2 * r, 65 + 2 * r) for r in range(4)]
M_PRV = ["s[%d:%d]" % (72 + 2 * r, 73 + 2 * r) for r in range(4)]
M_PR0 = ["s[%d:%d]" % (80 + 2 * r, 81 + 2 * r) for r in range(4)]
sPWQ, sPWO, sPW13, sPW2 = "s88", "s89", "s90", "s91"
sD0, sD1, sD2 = "s92", "s93", "s94"
sW7k, sW4k, sQs, sPWQ7, sQm, sKey, sPW137, sBG, sB2 = ["s%d" % i for i in range(4, 13)]
sWQr, sW3r, sW1r, sW2r, sWOr = "s[36:39]", "s[40:43]", "s[88:91]", "s[12:15]", "s[16:19]"
sRB = "s3"; sM3 = "s[20:21]"; sPoll = sFast; sF0, sF1 = "s22", "s23"
sN = ["s%d" % i for i in range(36, 44)]
sA0, sA1 = "s95", "s96"
sStamp = "s[98:99]"; sStN = "s97"
vLane, vL0, vL64, vL128, vNinf, vL15, vG = "v1", "v2", "v3", "v4", "v5", "v6", "v7"
RES = 8
vPoll, vPo, vTag, vWo = "v16", "v17", "v18", "v19"
vOnes = 20
vJunk = "v16"
vStat = "v25"
vT = ["v%d" % i for i in range(26, 32)]

def V(n, cnt=1): return "v%d" % n if cnt == 1 else "v[%d:%d]" % (n, n + cnt - 1)
def A(n, cnt=1): return "a%d" % n if cnt == 1 else "a[%d:%d]" % (n, n + cnt - 1)
def lds(addr):
    b = addr >> 16
    return (vL0, vL64, vL128)[b], addr & 0xFFFF
_lab = [0]
def L(p="L"):
    _lab[0] += 1; return "%s%d" % (p, _lab[0])

STAMPS = []
def stamp(p, name):
    if not OPT["stamps"]: return
    idx = len(STAMPS); STAMPS.append(name); assert idx < 128
    p.e("%s %s" % ("s_memrealtime" if name.startswith("R") else "s_memtime", sStamp))
    p.e("s_waitcnt lgkmcnt(0)")
    p.e("v_writelane_b32 v%d, s98, %d" % (0 if idx < 64 else 24, idx % 64))

def stamp3(p, name):
    if OPT['stamps'] >= 3: stamp(p, name)

def stamp2(p, name):
    if OPT['stamps'] >= 2: stamp(p, name)

def dma_linear(p, sbase, src_const, lds_addr, nfr, mods=""):
    per = nfr // 4; assert per * 4 == nfr
    toks = []
    p.e("s_mul_i32 %s, %s, %d" % (sD0, sW, per * 1024))
    p.e("s_add_u32 %s, %s, %s" % (sD1, sD0, sbase))
    for g0 in range(0, per, 4):
        p.e("s_add_u32 m0, %s, %d" % (sD0, lds_addr + g0 * 1024))
        p.e("s_add_u32 %s, %s, %d" % (sD2, sD1, src_const + g0 * 1024))
        for u in range(min(4, per - g0)):
            toks.append(p.e("buffer_load_dwordx4 %s, %s, %s offen offset:%d %s lds" % (vL0, sWS, sD2, u * 1024, mods)))
    return toks

def poll(p, soff, stag, voff, out=None, mid=None):
    lp, ld = L("Lp"), L("Ld")
    old = p.maybe; p.maybe = old or "poll"
    if mid:
        p.e("buffer_load_dword %s, %s, %s, %s offen sc1" % (vPoll, voff, sWS, soff))
        mid(p)
        p.e("s_waitcnt vmcnt(0)")
        p.e("v_cmp_ne_u32 vcc, %s, %s" % (stag, vPoll))
        p.e("s_cbranch_vccz %s" % (out or ld))
    p.e("%s:" % lp)
    p.e("buffer_load_dword %s, %s, %s, %s offen sc1" % (vPoll, voff, sWS, soff))
    p.e("s_waitcnt vmcnt(0)")
    p.e("v_cmp_ne_u32 vcc, %s, %s" % (stag, vPoll))
    p.e("s_cbranch_vccz %s" % (out or ld))
    p.e("s_sub_u32 %s, %s, 1" % (sBud, sBud))
    p.e("s_cbranch_scc0 %s" % lp)
    p.e("s_mov_b32 %s, 0" % sBud)
    p.e("%s:" % ld)
    p.maybe = old

def flag_store(p, soff, stag, sc1):
    p.e("v_mov_b32 %s, %s" % (vTag, stag))
    p.e("s_mov_b64 exec, 1")
    p.e("buffer_store_dword %s, off, %s, %s %s" % (vTag, sWS, soff, "sc1" if sc1 else ""))
    p.e("s_mov_b64 exec, -1")

def xgroup_reduce(p, regs, op, tmp):
    for perm in ("v_permlane16_swap_b32", "v_permlane32_swap_b32"):
        for r, t in zip(regs, tmp): p.e("v_mov_b32 %s, %s" % (t, r))
        for r, t in zip(regs, tmp): p.e("%s %s, %s" % (perm, r, t))
        for r, t in zip(regs, tmp): p.e("%s %s, %s, %s" % (op, r, r, t))

def finish_stats(p, s1, s2, nmean, rstd, tmp):
    p.e("v_mul_f32 %s, 0x%x, %s" % (nmean, f2u(-1.0 / 448), s1))
    p.e("v_mul_f32 %s, %s, %s" % (tmp, nmean, nmean))
    p.e("v_fma_f32 %s, %s, %s, -%s" % (tmp, s2, sInv448, tmp))
    p.e("v_max_f32 %s, 0, %s" % (tmp, tmp))
    p.e("v_add_f32 %s, 0x%x, %s" % (tmp, f2u(1e-5), tmp))
    p.e("v_rsq_f32 %s, %s" % (rstd, tmp))
sInv448 = "s100"; sH = "s101"
HEADMAP = [0, 7, 14, 5, 12, 3, 10, 2, 4, 6, 9, 1, 8, 15, 11, 13] if OPT.get("hmap", 1) else list(range(16))

def startup(p):
    p.e("s_cmp_ge_u32 s2, 256")
    p.e("s_cbranch_scc1 Lend")
    if OPT["stamps"]:
        p.e("s_memrealtime s[64:65]"); p.e("s_memtime s[66:67]")
    k1 = p.e("s_load_dwordx16 s[4:19], s[0:1], 0")
    k2 = p.e("s_load_dwordx4 s[20:23], s[0:1], 64")
    p.e("s_getpc_b64 s[36:37]")
    p.e("Lpc:")
    p.e("s_lshr_b32 %s, s2, 3" % sT[0])
    p.e("v_and_b32 %s, 63, v0" % vLane)
    p.e("v_lshrrev_b32 v26, 6, v0")
    p.e("s_mul_i32 %s, %s, CODE_NL" % (sT[1], sT[0]))
    p.e("v_min_u32 v27, CODE_NL-1, %s" % vLane)
    p.e("v_add_u32 v27, %s, v27" % sT[1])
    p.e("v_lshlrev_b32 v27, 7, v27")
    p.e("v_min_u32 v27, Lcode_end-Lpc-4, v27")
    p.e("v_readfirstlane_b32 %s, v26" % sW)
    p.e("global_load_dword %s, v27, s[36:37]" % vJunk)
    p.e("s_and_b32 %s, s2, 7" % sT[1])
    p.e("s_lshr_b32 %s, %s, 4" % (sC, sT[0]))
    p.e("s_lshl1_add_u32 %s, %s, %s" % (sC, sT[1], sC))
    p.e("s_and_b32 %s, %s, 15" % (sM, sT[0]))
    hk = sum(h << (4 * i) for i, h in enumerate(HEADMAP))
    p.e("s_mov_b32 s70, 0x%x" % (hk & 0xFFFFFFFF)); p.e("s_mov_b32 s71, 0x%x" % (hk >> 32))
    p.e("s_lshl_b32 %s, %s, 2" % (sT[1], sM)); p.e("s_lshr_b64 s[70:71], s[70:71], %s" % sT[1]); p.e("s_and_b32 %s, s70, 15" % sH)
    p.e("s_cmp_ge_u32 %s, 7" % sM)
    p.e("s_cselect_b32 %s, 1, 0" % sTH)
    p.e("s_cselect_b32 %s, 7, 0" % sT[1])
    p.e("s_sub_u32 %s, %s, %s" % (sCB, sM, sT[1]))
    p.e("s_cmp_ge_u32 %s, 14" % sM)
    p.e("s_cselect_b32 %s, 1, 0" % sIdle)
    p.e("s_cselect_b32 %s, 7, 0" % sT[1])
    p.e("s_sub_u32 %s, %s, %s" % (sCB, sCB, sT[1]))
    p.e("v_lshlrev_b32 %s, 4, %s" % (vL0, vLane))
    p.e("v_and_b32 %s, 15, %s" % (vL15, vLane))
    p.e("v_lshrrev_b32 %s, 4, %s" % (vG, vLane))
    p.e("v_lshrrev_b32 v28, 3, %s" % vLane)
    p.e("v_and_b32 v29, 7, %s" % vLane)
    p.e("v_lshlrev_b32 v29, 4, v29")
    p.wait(k1, k2)
    if OPT["stamps"]:
        p.e("s_memtime s[68:69]"); p.e("s_waitcnt lgkmcnt(0)")
    if OPT.get("wsbase", 0):
        p.e("s_add_u32 s22, s22, 0x%x" % (OPT["wsbase"] << 20)); p.e("s_addc_u32 s23, s23, 0")
    for srd, lo, size in ((24, 22, WS_USED), (28, 4, 1835008), (32, 18, 1835008)):
        p.e("s_mov_b32 s%d, s%d" % (srd, lo)); p.e("s_mov_b32 s%d, s%d" % (srd + 1, lo + 1))
        p.e("s_mov_b32 s%d, 0x%x" % (srd + 2, size)); p.e("s_mov_b32 s%d, 0x20000" % (srd + 3))
    def srd(n, lo, size):
        p.e("s_mov_b32 s%d, s%d" % (n, lo)); p.e("s_mov_b32 s%d, s%d" % (n + 1, lo + 1))
        p.e("s_mov_b32 s%d, %d" % (n + 2, size)); p.e("s_mov_b32 s%d, 0x20000" % (n + 3))
    srd(36, 6, 1204224)
    if OPT.get("xtouch", 1):
        p.e("s_lshl2_add_u32 %s, %s, %s" % (sT[0], sM, sW)); p.e("s_lshl_b32 %s, %s, 11" % (sT[0], sT[0]))
        p.e("s_mul_i32 %s, %s, 114688" % (sT[1], sC)); p.e("s_add_u32 %s, %s, %s" % (sT[0], sT[0], sT[1]))
        p.e("s_sub_u32 %s, %s, 14336" % (sT[1], sT[0])); p.e("s_cselect_b32 %s, %s, %s" % (sT[0], sT[0], sT[1]))
        p.e("v_lshlrev_b32 v30, 7, %s" % vL15)
        p.e("s_mov_b64 exec, 0xffff")
        p.e("buffer_load_dword %s, v30, %s, %s offen" % (vJunk, sX, sT[0]))
        p.e("s_mov_b64 exec, -1")
    p.e("s_lshl_b32 %s, %s, 7" % (sT[0], sC))
    p.e("s_lshl_b32 %s, %s, 5" % (sT[1], sW))
    p.e("s_add_u32 %s, %s, %s" % (sT[1], sT[1], sT[0]))
    p.e("s_mul_i32 %s, %s, 896" % (sA0, sT[1]))
    p.e("s_mul_i32 %s, %s, 28672" % (sA1, sW))
    p.e("v_and_b32 v25, 7, %s" % vLane)
    p.e("v_xor_b32 v25, v25, v28")
    p.e("v_lshlrev_b32 v25, 4, v25")
    p.e("s_movk_i32 %s, 896" % sT[2])
    p.e("v_mad_u32_u24 v25, v28, %s, v25" % sT[2])
    xd = []
    def xdma(i):
        rb, lc = i // 7, i % 7
        if lc == 0 and rb: p.e("s_add_u32 %s, %s, 7168" % (sA0, sA0))
        p.e("s_add_u32 m0, %s, %d" % (sA1, i * 1024 - lc * 128))
        xd.append(p.e("buffer_load_dwordx4 v25, %s, %s offen offset:%d lds" % (sX, sA0, lc * 128)))
    srd(40, 14, 1605632); srd(88, 12, 1605632); srd(12, 16, 1605632); srd(16, 8, 401408)
    def wtouch(lst, p=p):
        p.e("s_lshl2_add_u32 %s, s2, %s" % (sT[0], sW))
        p.e("v_lshlrev_b32 v30, 7, %s" % vLane)
        for sr, n in lst:
            p.e("s_mul_i32 %s, %s, %d" % (sT[1], sT[0], n * 128))
            p.e("s_mov_b64 exec, 0x%x" % ((1 << n) - 1))
            p.e("buffer_load_dword %s, v30, %s, %s offen" % (vJunk, sr, sT[1]))
        p.e("s_mov_b64 exec, -1")
    low = [(sW1r, 13), (sW3r, 13), (sWOr, 4), (sW2r, 13)]
    TM = OPT.get("tmode", 3)
    if TM in (1, 3): wtouch([(sWQr, 10)])
    if TM == 2: wtouch([(sWQr, 10)] + low)
    if OPT["stamps"]:
        p.e("s_lshl_b32 %s, s2, 2" % sStN); p.e("s_add_u32 %s, %s, %s" % (sStN, sStN, sW))
        p.e("s_lshl_b32 %s, %s, 9" % (sStN, sStN)); p.e("s_add_u32 %s, %s, %d" % (sStN, sStN, OFF_STAMP))
        for nm_, sr in (("entry", "s66"), ("R0", "s64"), ("S.karg", "s68")):
            idx = len(STAMPS); STAMPS.append(nm_)
            p.e("v_writelane_b32 v0, %s, %d" % (sr, idx))
    p.e("s_lshl_b32 %s, %s, 7" % (sT[0], sC))
    p.e("s_lshl_b32 %s, %s, 7" % (sT[1], sCB))
    p.e("s_add_u32 %s, %s, %d" % (sT[1], sT[1], OFF_EG))
    p.e("s_add_u32 %s, %s, 128" % (sT[2], sT[0]))
    e1 = p.e("s_load_dword %s, s[22:23], %s" % (sE, sT[0]))
    e2 = p.e("s_load_dword %s, s[22:23], %s" % (sEn, sT[2]))
    e3 = p.e("s_load_dword %s, s[22:23], %s" % (sEg, sT[1]))
    p.e("s_lshr_b32 %s, %s, 1" % (sT[0], sW)); p.e("s_mul_i32 %s, %s, 192" % (sT[1], sT[0]))
    p.e("s_mul_i32 %s, %s, 56" % (sT[2], sH)); p.e("s_movk_i32 %s, 2688" % sT[3]); p.e("s_movk_i32 %s, 896" % sT[4])
    for u in range(3):
        r = 244 + u
        p.e("v_add_u32 v26, %s, %s" % (sT[1], vLane))
        if u: p.e("v_add_u32 v26, %d, v26" % (64 * u))
        p.e("v_mul_u32_u24 v27, 5462, v26"); p.e("v_lshrrev_b32 v27, 16, v27")
        p.e("v_mul_u32_u24 v28, 12, v27"); p.e("v_sub_u32 v26, v26, v28")
        p.e("v_lshrrev_b32 v28, 2, v27"); p.e("v_lshrrev_b32 v29, 3, v27"); p.e("v_xor_b32 v28, v28, v29")
        p.e("v_and_b32 v28, 1, v28"); p.e("v_lshlrev_b32 v28, 1, v28"); p.e("v_xor_b32 v26, v26, v28")
        p.e("v_lshrrev_b32 v28, 2, v26"); p.e("v_and_b32 v26, 3, v26")
        p.e("v_lshl_add_u32 v26, v26, 4, %s" % sT[2])
        p.e("v_mad_u32_u24 v26, v28, %s, v26" % sT[4])
        p.e("v_mad_u32_u24 v%d, v27, %s, v26" % (r, sT[3]))
        if u: p.e("v_subrev_u32 v%d, %d, v%d" % (r, 1024 * u, r))
    p.e("s_and_b32 %s, %s, 1" % (sT[1], sW))
    p.e("s_mul_i32 %s, %s, 86016" % (sQs, sT[1]))
    p.e("s_mul_i32 %s, %s, 6144" % (sQm, sT[1])); p.e("s_mul_i32 %s, %s, 3072" % (sT[0], sT[0])); p.e("s_add_u32 %s, %s, %s" % (sQm, sQm, sT[0]))
    p.e("v_add_u32 %s, 0x10000, %s" % (vL64, vL0))
    p.e("v_add_u32 %s, 0x20000, %s" % (vL128, vL0))
    p.e("v_mov_b32 %s, 0xff800000" % vNinf)
    p.e("v_mov_b32 %s, 0" % vPo)
    for i in range(4): p.e("v_mov_b32 v%d, 0x3f803f80" % (vOnes + i))
    p.e("s_mov_b32 %s, 0x%x" % (sInv448, f2u(1.0 / 448)))
    p.e("s_lshl_b32 %s, %s, 17" % (sCl17, sC))
    p.e("s_lshl_b32 %s, %s, 19" % (sCl19, sC))
    p.e("s_mov_b32 %s, 60000" % sBud)
    p.e("s_mov_b32 s20, 0"); p.e("s_mov_b32 s21, 0xffff0000")
    for r in range(4):
        p.e("v_lshl_add_u32 v26, %s, 2, %d" % (vG, r))
        p.e("v_sub_u32 v27, %s, v26" % vL15)
        p.e("v_and_b32 v28, 1, v27")
        p.e("v_cmp_eq_u32 vcc, 0, v28")
        p.e("v_cmp_le_i32_e64 %s, 0, v27" % M_OWN[r])
        p.e("v_cmp_ge_i32_e64 %s, -2, v27" % M_PRV[r])
        p.e("s_and_b64 %s, %s, vcc" % (M_OWN[r], M_OWN[r]))
        p.e("s_and_b64 %s, %s, vcc" % (M_PRV[r], M_PRV[r]))
    p.e("s_or_b32 %s, %s, %s" % (sT[0], sC, sW))
    p.e("s_cmp_eq_u32 %s, 0" % sT[0])
    for r in range(4): p.e("s_cselect_b64 %s, 0, %s" % (M_PR0[r], M_PRV[r]))
    stamp(p, "S.const")
    p.wait(e1, e2, e3)
    for s in (sE, sEn, sEg):
        p.e("s_mul_i32 %s, %s, 0x9e3779b1" % (s, s)); p.e("s_add_u32 %s, %s, 0x7f4a7c15" % (s, s))
    lh = L()
    p.e("s_getreg_b32 %s, hwreg(HW_REG_XCC_ID)" % sXcc)
    p.e("s_and_b32 %s, %s, 15" % (sXcc, sXcc))
    p.e("s_andn2_b32 %s, %s, 15" % (sT[0], sE))
    p.e("s_or_b32 %s, %s, %s" % (sXcc, sXcc, sT[0]))
    p.e("s_mov_b32 %s, 2" % sFast)
    p.e("s_cmp_lg_u32 %s, 3" % sW); p.e("s_cbranch_scc1 %s" % lh)
    p.maybe = "h"
    p.e("s_lshl_b32 %s, %s, 11" % (sT[0], sC)); p.e("s_lshl_b32 %s, %s, 7" % (sT[1], sM))
    p.e("s_add_u32 %s, %s, %s" % (sT[0], sT[0], sT[1])); p.e("s_add_u32 %s, %s, %d" % (sT[0], sT[0], OFF_HELLO))
    flag_store(p, sT[0], sXcc, True)
    p.maybe = False
    p.e("%s:" % lh)
    p.e("v_and_b32 v80, 7, %s" % vLane)
    p.e("v_bfe_u32 v81, %s, 3, 1" % vLane)
    p.e("v_xor_b32 v82, %s, v80" % vG)
    p.e("v_lshlrev_b32 v82, 4, v82")
    p.e("v_lshl_add_u32 v82, v80, 7, v82")
    p.e("s_movk_i32 %s, 7168" % sT[2])
    p.e("v_mad_u32_u24 v82, v81, %s, v82" % sT[2])
    p.e("v_add_u32 v82, %s, v82" % sA1)
    p.e("v_xor_b32 v83, 64, v82")
    def dots(j):
        q = Prog()
        for i in range(56):
            reg = 128 + 56 * j + i
            q.e("v_dot2_f32_bf16 v%d, v%d, v%d, %s" % (96 + 2 * j, reg, vOnes, "0" if i == 0 else "v%d" % (96 + 2 * j)))
            q.e("v_dot2_f32_bf16 v%d, v%d, v%d, %s" % (97 + 2 * j, reg, reg, "0" if i == 0 else "v%d" % (97 + 2 * j)))
        return q.ins
    def xreads(j):
        return [p.e("ds_read_b128 %s, v%d offset:%d" % (V(128 + (j * 14 + s_) * 4, 4), 82 + (s_ & 1), j * 14336 + (s_ >> 1) * 1024)) for s_ in range(14)]
    bg = BGQ
    for i in range(28): xdma(i)
    wq = [rawq(p, 0)]
    stamp(p, "S.xiss")
    p.wait(xd[:14]); r0 = xreads(0)
    wq += [rawq_bg(bg, 1), rawq_bg(bg, 2)]
    if TM == 1:
        q = Prog(); wtouch(low, q); bg.append(Item(q.ins))
    if TM == 3:
        q = Prog(); wtouch([(sWOr, 4)], q); bg.append(Item(q.ins))
    bg.pt(p, 3)
    p.wait(r0)
    p.add(spr(dots(0), bg, OPT.get("tail_gap", 100)))
    while bg: bg.pt(p)
    p.wait(xd)
    stamp(p, "S.xin")
    xreads(1)
    p.e("v_lshrrev_b32 v28, 3, %s" % vLane)
    p.e("v_and_b32 v29, 7, %s" % vLane)
    p.e("v_lshrrev_b32 v26, 4, %s" % vLane); p.e("v_lshlrev_b32 v26, 1, v26"); p.e("v_xor_b32 v26, v26, v29")
    p.e("v_lshlrev_b32 v26, 4, v26"); p.e("s_movk_i32 %s, 896" % sT[2]); p.e("v_mad_u32_u24 %s, v28, %s, v26" % (vWo, sT[2]))
    p.e("v_lshlrev_b32 v29, 4, v29")
    p.e("v_mad_u32_u24 v127, v28, %s, v29" % sT[2])
    p.e("s_movk_i32 %s, 3584" % sT[2]); p.e("v_mad_u32_u24 v126, v28, %s, v29" % sT[2])
    p.e("s_mul_i32 %s, %s, 224" % (sRB, sM)); p.e("s_mul_i32 %s, %s, 114688" % (sT[1], sC)); p.e("s_add_u32 %s, %s, %s" % (sRB, sRB, sT[1]))
    p.e("s_add_u32 %s, %s, %s" % (sRB, sRB, sA1))
    p.e("s_lshl1_add_u32 s22, %s, %s" % (sC, sTH)); p.e("s_mul_i32 s22, s22, 57344")
    p.e("s_lshl_b32 %s, %s, 7" % (sT[1], sCB)); p.e("s_add_u32 s22, s22, %s" % sT[1])
    p.e("s_mul_i32 %s, %s, 7168" % (sT[1], sW)); p.e("s_add_u32 s22, s22, %s" % sT[1])
    p.e("s_cmp_lg_u32 %s, 0" % sIdle); p.e("s_cselect_b32 s22, 0x40000000, s22")
    p.e("s_cmp_ge_u32 %s, 14" % sC); p.e("s_cselect_b32 s22, 0x40000000, s22"); p.e("s_cselect_b32 %s, 0x40000000, %s" % (sRB, sRB))
    p.e("s_lshl_b32 s23, %s, 10" % sW)
    p.e("s_mul_i32 s9, %s, 86016" % sC); p.e("s_mul_i32 %s, %s, 21504" % (sT[1], sW)); p.e("s_add_u32 s9, s9, %s" % sT[1])
    p.e("s_cmp_ge_u32 %s, 14" % sC); p.e("s_cselect_b32 s9, 0x40000000, s9")
    p.e("v_lshrrev_b32 v26, 2, %s" % vL15); p.e("v_and_b32 v27, 3, %s" % vLane); p.e("s_movk_i32 %s, 896" % sT[2])
    p.e("v_mul_u32_u24 v247, 2688, %s" % vG); p.e("v_lshl_add_u32 v247, v27, 4, v247"); p.e("v_mad_u32_u24 v247, v26, %s, v247" % sT[2])
    p.e("s_mul_i32 %s, %s, 56" % (sT[0], sH)); p.e("v_add_u32 v247, %s, v247" % sT[0])
    p.e("v_cmp_eq_u32 vcc, 3, v26"); p.e("v_bfrev_b32 v31, 1"); p.e("v_cndmask_b32 v247, v247, v31, vcc")
    p.waitall(vm=False)
    p.e("s_barrier")
    role = []
    for half in range(2):
        for mat, sr in enumerate((sW1r, sW3r)):
            q = Prog()
            q.e("s_add_u32 m0, s23, %d" % (L_ROLE + half * 8192 + mat * 4096 - half * 128))
            q.e("buffer_load_dwordx4 v126, %s, %s offen offset:%d nt lds" % (sr, sRB, half * 128))
            role.append(Item(q.ins))
    for u in range(2):
        q = Prog()
        q.e("s_add_u32 m0, s23, %d" % (L_R4 + u * 4096))
        if u: q.e("s_add_u32 s22, s22, 28672")
        q.e("buffer_load_dwordx4 v127, %s, s22 offen nt lds" % sW2r)
        role.append(Item(q.ins))
    for u in range(2):
        q = Prog()
        q.e("s_lshl_b32 %s, s23, 1" % sBG); q.e("s_add_u32 m0, %s, %d" % (sBG, L_R1 + u * 1024))
        if u: q.e("s_add_u32 s9, s9, 10752")
        q.e("buffer_load_dwordx4 v247, %s, s9 offen lds" % sWQr)
        role.append(Item(q.ins))
    pp_ = p; p = Prog()
    p.e("s_mul_i32 %s, %s, 86016" % (sPWQ, sM)); p.e("s_add_u32 %s, %s, %d" % (sPWQ, sPWQ, OFF_PWQ))
    p.e("s_mul_i32 %s, %s, 200704" % (sPW13, sM)); p.e("s_add_u32 %s, %s, %d" % (sPW13, sPW13, OFF_PW13))
    p.e("s_mul_i32 %s, %s, 229376" % (sPW2, sCB)); p.e("s_mul_i32 %s, %s, 57344" % (sT[0], sW))
    p.e("s_add_u32 %s, %s, %s" % (sPW2, sPW2, sT[0])); p.e("s_add_u32 %s, %s, %d" % (sPW2, sPW2, OFF_PW2))
    p.e("s_mul_i32 %s, %s, 7168" % (sW7k, sW)); p.e("s_lshl_b32 %s, %s, 12" % (sW4k, sW))
    p.e("s_add_u32 %s, %s, %s" % (sPWQ7, sPWQ, sW7k)); p.e("s_add_u32 %s, %s, %s" % (sPW137, sPW13, sW7k))
    p.e("s_mul_i32 %s, %s, 25088" % (sPWO, sW)); p.e("s_lshl_b32 %s, %s, 7" % (sT[0], sCB)); p.e("s_add_u32 %s, %s, %s" % (sPWO, sPWO, sT[0]))
    p.e("s_cmp_lg_u32 %s, 0" % sIdle)
    p.e("s_cselect_b32 %s, 0x40000000, %s" % (sPWO, sPWO)); p.e("s_cselect_b32 %s, 0x40000000, %s" % (sPW2, sPW2))
    role.append(Item(p.ins)); p = pp_
    stamp(p, "S.role2")
    return wq, dots(1), role

def rawq_bg(bg, ch):
    q = Prog(); t = rawq(q, ch)
    bg.append(Item(q.ins[:3]))
    for k in (3, 4):
        it = Item([q.ins[k]]); it.cont = True; bg.append(it)
    return t

def rawq(p, ch):
    p.e("s_add_u32 m0, %s, %d" % (sQm, L_WQ(2 * ch)))
    p.e("s_add_u32 %s, %s, %d" % (sBG, sQs, ch * 172032))
    return [p.e("buffer_load_dwordx4 v%d, %s, %s offen offset:%d lds" % (244 + u, sWQr, sBG, u * 1024)) for u in range(3)]

def repack(p):
    sa, sb, sc_, sd, se, sf = "s40", "s41", "s42", "s43", "s22", "s23"
    p.e("v_lshrrev_b32 v26, 2, %s" % vL15)
    p.e("v_and_b32 v27, 3, %s" % vLane)
    p.e("v_lshlrev_b32 v27, 3, v27")
    p.e("v_lshrrev_b32 v30, 1, %s" % vG)
    p.e("v_and_b32 v29, 1, %s" % vG)
    p.e("v_lshl_add_u32 v28, v30, 2, v26")
    p.e("v_lshl_add_u32 v28, v28, 7, v27")
    p.e("v_lshl_add_u32 v28, v29, 12, v28")
    p.e("s_lshr_b32 %s, %s, 1" % (sT[0], sW)); p.e("s_and_b32 %s, %s, 1" % (sT[1], sW)); p.e("s_lshl_b32 %s, %s, 6" % (sT[1], sT[1]))
    p.e("s_lshl_b32 %s, %s, 13" % (sT[2], sT[0])); p.e("s_add_u32 %s, %s, %s" % (sT[2], sT[2], sT[1])); p.e("s_add_u32 %s, %s, %d" % (sT[2], sT[2], L_ROLE))
    p.e("v_add_u32 v28, %s, v28" % sT[2])
    for i in range(2):
        for pp in range(2):
            f = 32 + (i * 2 + pp) * 4
            p.e("ds_read_b64_tr_b16 %s, v28 offset:%d" % (A(f, 2), pp * 1024 + i * 32))
            p.e("ds_read_b64_tr_b16 %s, v28 offset:%d" % (A(f + 2, 2), pp * 1024 + i * 32 + 2048))
    p.e("v_lshl_add_u32 v30, v30, 4, v26")
    p.e("v_lshl_add_u32 v30, v29, 2, v30")
    p.e("v_lshl_add_u32 v30, v30, 7, v27")
    p.e("s_lshl_b32 %s, %s, 12" % (sT[2], sT[0])); p.e("s_add_u32 %s, %s, %s" % (sT[2], sT[2], sT[1])); p.e("s_add_u32 %s, %s, %d" % (sT[2], sT[2], L_R4))
    p.e("v_add_u32 v30, %s, v30" % sT[2])
    for t in range(2):
        p.e("ds_read_b64_tr_b16 %s, v30 offset:%d" % (A(48 + 4 * t, 2), t * 32))
        p.e("ds_read_b64_tr_b16 %s, v30 offset:%d" % (A(50 + 4 * t, 2), t * 32 + 1024))
    p.e("v_lshl_add_u32 v31, %s, 3, v26" % vG); p.e("v_lshl_add_u32 v31, v31, 8, v27")
    p.e("s_lshl_b32 %s, %s, 6" % (sT[2], sW)); p.e("s_add_u32 %s, %s, %d" % (sT[2], sT[2], L_R1)); p.e("v_add_u32 v31, %s, v31" % sT[2])
    for t in range(2):
        p.e("ds_read_b64_tr_b16 %s, v31 offset:%d" % (A(56 + 4 * t, 2), t * 32))
        p.e("ds_read_b64_tr_b16 %s, v31 offset:%d" % (A(58 + 4 * t, 2), t * 32 + 1024))
    p.e("s_mul_i32 %s, %s, 6144" % (se, sC)); p.e("s_lshl_b32 %s, %s, 11" % (sT[1], sW)); p.e("s_add_u32 %s, %s, %s" % (se, se, sT[1]))
    p.e("s_add_u32 %s, %s, %s" % (se, se, sPWQ))
    p.e("s_mul_i32 %s, %s, 57344" % (sa, sW)); p.e("s_add_u32 %s, %s, %s" % (sa, sa, sPW13))
    p.e("s_lshl_b32 %s, %s, 11" % (sT[1], sC)); p.e("s_add_u32 %s, %s, %s" % (sa, sa, sT[1]))
    p.e("s_add_u32 %s, %s, 28672" % (sb, sa))
    p.e("s_mul_i32 %s, %s, 14" % (sc_, sM)); p.e("s_add_u32 %s, %s, %s" % (sc_, sc_, sC))
    p.e("s_mul_i32 %s, %s, 896" % (sc_, sc_))
    p.e("s_lshl_b32 %s, %s, 8" % (sT[1], sW))
    p.e("s_add_u32 %s, %s, %s" % (sc_, sc_, sT[1])); p.e("s_add_u32 %s, %s, %d" % (sc_, sc_, OFF_C13))
    p.e("s_add_u32 %s, %s, 128" % (sf, sc_))
    p.e("s_lshl1_add_u32 %s, %s, %s" % (sd, sC, sTH)); p.e("s_lshl_b32 %s, %s, 13" % (sd, sd))
    p.e("s_mul_i32 %s, %s, 229376" % (sT[1], sCB)); p.e("s_add_u32 %s, %s, %s" % (sd, sd, sT[1]))
    p.e("s_lshl_b32 %s, %s, 11" % (sT[1], sW)); p.e("s_add_u32 %s, %s, %s" % (sd, sd, sT[1])); p.e("s_add_u32 %s, %s, %d" % (sd, sd, OFF_PW2))
    p.e("s_cmp_ge_u32 %s, 14" % sC)
    for r_ in (sa, sb, sc_, sd, se, sf): p.e("s_cselect_b32 %s, 0x40000000, %s" % (r_, r_))
    p.e("s_cmp_eq_u32 %s, 3" % sW)
    for r_ in (sb, se, sf): p.e("s_cselect_b32 %s, 0x40000000, %s" % (r_, r_))
    p.e("s_cmp_ge_u32 %s, 14" % sM); p.e("s_cselect_b32 %s, 0x40000000, %s" % (sd, sd))
    p.e("v_lshlrev_b32 v127, 2, %s" % vLane)
    p.waitall(vm=False)
    for i in range(2):
        p.e("v_mfma_f32_32x32x16_bf16 %s, %s, %s, 0" % (A(64 + 16 * i, 16), V(vOnes, 4), A(32 + 8 * i, 4)))
        p.e("v_mfma_f32_32x32x16_bf16 %s, %s, %s, %s" % (A(64 + 16 * i, 16), V(vOnes, 4), A(36 + 8 * i, 4), A(64 + 16 * i, 16)))
    items = []
    for r0, so in ((32, sa), (40, sb), (48, sd), (56, se)):
        for k in range(2):
            q = Prog(); q.e("buffer_store_dwordx4 %s, %s, %s, %s offen offset:%d sc1" % (A(r0 + 4 * k, 4), vL0, sWS, so, k * 1024)); items.append(Item(q.ins))
    q = Prog()
    q.e("s_mov_b32 exec_hi, 0")
    q.e("buffer_store_dword a64, v127, %s, %s offen sc1" % (sWS, sc_))
    q.e("buffer_store_dword a80, v127, %s, %s offen sc1" % (sWS, sf))
    q.e("s_mov_b32 exec_hi, -1")
    items.append(Item(q.ins))
    return items

def wf_flag(p):
    lw = L()
    p.e("s_cmp_lg_u32 %s, 3" % sW); p.e("s_cbranch_scc1 %s" % lw)
    p.maybe = "w3"
    p.e("s_lshl_b32 %s, %s, 11" % (sT[0], sM)); p.e("s_lshl_b32 %s, %s, 7" % (sT[1], sC))
    p.e("s_add_u32 %s, %s, %s" % (sT[0], sT[0], sT[1])); p.e("s_add_u32 %s, %s, %d" % (sT[0], sT[0], OFF_WF2))
    flag_store(p, sT[0], sEg, True)
    p.maybe = False
    p.e("%s:" % lw)

def wf_poll(p):
    lw = L()
    p.e("s_cmp_lg_u32 %s, 3" % sW); p.e("s_cbranch_scc1 %s" % lw)
    p.maybe = "w3"
    p.e("v_mul_u32_u24 v30, 7, %s" % vG); p.e("v_add_u32 v30, %s, v30" % sCB); p.e("v_mov_b32 v31, %s" % sCB)
    p.e("v_cmp_gt_u32 vcc, 16, v30"); p.e("v_cndmask_b32 v30, v31, v30, vcc")
    p.e("v_lshlrev_b32 v30, 11, v30"); p.e("v_lshl_add_u32 v31, %s, 7, v30" % vL15)
    p.e("s_mov_b32 %s, %d" % (sT[0], OFF_WF2))
    poll(p, sT[0], sEg, "v31")
    p.maybe = False
    p.e("%s:" % lw)

def halo_dma0(bg):
    p = Prog(); n0 = 0
    p.e("s_lshl_b32 %s, %s, 7" % (sD0, sC))
    p.e("s_sub_u32 %s, %s, 16" % (sD1, sD0)); p.e("s_mul_i32 %s, %s, 896" % (sD1, sD1))
    halo_s0(p, sD2); p.e("s_lshl_b32 %s, %s, 6" % (sA1, sD2)); p.e("s_add_u32 %s, %s, %s" % (sD1, sD1, sA1))
    p.e("s_cmp_eq_u32 %s, 0" % sC); p.e("s_cselect_b32 %s, 0x40000000, %s" % (sD1, sD1))
    p.e("s_lshl_b32 %s, %s, 10" % (sD2, sD2))
    p.e("v_mul_u32_u24 v123, 896, %s" % vL15); p.e("v_lshl_add_u32 v123, %s, 4, v123" % vG)
    for u in range(4):
        p.e("s_add_u32 m0, %s, %d" % (sD2, L_HXP[0] + u * 1024 - u * 64))
        p.e("buffer_load_dwordx4 v123, %s, %s offen offset:%d lds" % (sX, sD1, u * 64))
    p.e("s_lshl_b32 %s, %s, 6" % (sD1, sTH)); p.e("s_add_u32 %s, %s, %s" % (sD1, sD1, sD0))
    p.e("s_lshl_b32 %s, %s, 4" % (sD2, sW)); p.e("s_add_u32 %s, %s, %s" % (sD1, sD1, sD2))
    p.e("s_mul_i32 %s, %s, 896" % (sD1, sD1)); p.e("s_lshl_b32 %s, %s, 7" % (sD2, sCB)); p.e("s_add_u32 %s, %s, %s" % (sD1, sD1, sD2))
    p.e("s_lshl_b32 %s, %s, 11" % (sA1, sW))
    for rb in range(2):
        if rb: p.e("s_add_u32 %s, %s, 7168" % (sD1, sD1))
        p.e("s_add_u32 m0, %s, %d" % (sA1, L_RES + rb * 1024))
        p.e("buffer_load_dwordx4 v25, %s, %s offen lds" % (sX, sD1))
    cur = Item()
    for i in p.ins:
        cur.append(i)
        if i.tok: bg.append(cur); cur = Item()
    return [i.tok for i in p.ins if i.tok]

def halo_finish0(p, hd):
    HQ = 80
    halo_s0(p, sT[0]); p.e("s_lshl_b32 %s, %s, 10" % (sT[0], sT[0])); p.e("s_add_u32 %s, %s, %d" % (sT[0], sT[0], L_HXP[0]))
    p.e("v_add_u32 v26, %s, %s" % (sT[0], vL0))
    p.e("v_lshrrev_b32 v27, 1, %s" % vG)
    p.e("v_and_b32 v28, 7, %s" % vLane); p.e("v_xor_b32 v27, v27, v28")
    p.e("v_lshlrev_b32 v27, 4, v27")
    p.e("v_lshl_add_u32 v27, %s, 7, v27" % vL15)
    p.e("v_and_b32 v28, 1, %s" % vG)
    p.e("v_lshl_add_u32 v27, v28, 3, v27")
    p.e("s_lshl_b32 %s, %s, 11" % (sT[3], sW)); p.e("s_add_u32 %s, %s, %d" % (sT[3], sT[3], L_RES))
    p.e("v_add_u32 v27, %s, v27" % sT[3])
    for t in range(1, 4): p.e("v_xor_b32 v%d, %d, v27" % (27 + t, 32 * t))
    p.e("v_lshlrev_b32 %s, 11, %s" % (vStat, vG))
    p.e("v_lshl_add_u32 %s, %s, 3, %s" % (vStat, vL15, vStat))
    p.wait(hd)
    rd = [p.e("ds_read_b128 %s, v26 offset:%d" % (V(HQ + 4 * u, 4), u * 1024)) for u in range(4)]
    rd += [p.e("ds_read_b64 %s, v%d" % (V(RES + 2 * t, 2), 27 + t)) for t in range(4)]
    p.e("s_cmp_eq_u32 %s, 3" % sW); p.e("s_cselect_b64 vcc, -1, 0")
    p.wait(rd)
    for i in range(8): p.e("v_cndmask_b32_e64 v%d, v%d, 0, vcc" % (HQ + i, HQ + i))
    for i in range(16):
        p.e("v_dot2_f32_bf16 v100, v%d, v%d, %s" % (HQ + i, vOnes, "0" if i == 0 else "v100"))
        p.e("v_dot2_f32_bf16 v101, v%d, v%d, %s" % (HQ + i, HQ + i, "0" if i == 0 else "v101"))
    xgroup_reduce(p, ["v100", "v101"], "v_add_f32", ["v106", "v107"])
    p.e("s_lshl_b32 %s, %s, 7" % (sT[0], sW)); p.e("s_add_u32 %s, %s, %d" % (sT[0], sT[0], L_HSP))
    p.e("v_lshl_add_u32 v26, %s, 3, %s" % (vL15, sT[0]))
    t = p.e("ds_write_b64 v26, v[100:101]")
    return t

def sT896(p):
    p.e("s_movk_i32 %s, 896" % sT[2]); return sT[2]
def halo_s0(p, dst):
    p.e("s_lshl_b32 %s, %s, 2" % (dst, sW))
    p.e("s_min_u32 %s, %s, 10" % (dst, dst))

def pretouch_o(p, pr):
    if not OPT["pretouch"]: return
    p.e("v_and_b32 v26, 7, %s" % vLane); p.e("v_lshlrev_b32 v26, 7, v26")
    p.e("v_bfe_u32 v27, %s, 3, 1" % vLane); p.e("v_lshl_add_u32 v26, v27, 14, v26")
    p.e("s_lshl_b32 %s, %s, 15" % (sT[0], sW)); p.e("s_lshl_b32 %s, %s, 10" % (sT[1], sM))
    p.e("s_add_u32 %s, %s, %s" % (sT[0], sT[0], sT[1])); p.e("s_add_u32 %s, %s, %s" % (sT[0], sT[0], sCl17))
    p.e("s_add_u32 %s, %s, %d" % (sT[0], sT[0], OFF_O[pr]))
    p.e("s_mov_b64 exec, 0xffff")
    p.e("buffer_load_dword %s, v26, %s, %s offen sc1" % (vJunk, sWS, sT[0]))
    p.e("s_mov_b64 exec, -1")

def xtile_base(p, dst, off):
    p.e("s_lshl_b32 %s, %s, 2" % (dst, sTH)); p.e("s_add_u32 %s, %s, %s" % (dst, dst, sW))
    p.e("s_mul_i32 %s, %s, 14336" % (dst, dst))
    p.e("s_lshl_b32 %s, %s, 11" % (sT[5], sCB)); p.e("s_add_u32 %s, %s, %s" % (dst, dst, sT[5]))
    p.e("s_add_u32 %s, %s, %s" % (dst, dst, sCl17)); p.e("s_add_u32 %s, %s, %d" % (dst, dst, off))
def xstat_base(p, dst, off):
    p.e("s_lshl_b32 %s, %s, 2" % (dst, sTH)); p.e("s_add_u32 %s, %s, %s" % (dst, dst, sW))
    p.e("s_lshl_b32 %s, %s, 7" % (dst, dst))
    p.e("s_lshl_b32 %s, %s, 10" % (sT[5], sCB)); p.e("s_add_u32 %s, %s, %s" % (dst, dst, sT[5]))
    p.e("s_add_u32 %s, %s, %s" % (dst, dst, sCl17)); p.e("s_add_u32 %s, %s, %d" % (dst, dst, off + XST))

def pretouch_x(p, off):
    if not OPT["pretouch"]: return
    xtile_base(p, sT[0], off); xstat_base(p, sT[1], off)
    p.e("v_lshlrev_b32 v26, 7, %s" % vLane)
    p.e("s_mov_b64 exec, 0xffff")
    p.e("buffer_load_dword %s, v26, %s, %s offen sc1" % (vJunk, sWS, sT[0]))
    p.e("s_mov_b64 exec, 1")
    p.e("buffer_load_dword %s, v26, %s, %s offen sc1" % (vJunk, sWS, sT[1]))
    p.e("s_mov_b64 exec, -1")

def pretouch_h(p, pr):
    if not OPT["pretouch"]: return
    p.e("v_and_b32 v26, 31, %s" % vLane); p.e("v_min_u32 v26, 27, v26"); p.e("v_lshlrev_b32 v26, 7, v26")
    p.e("v_lshrrev_b32 v27, 5, %s" % vLane)
    p.e("s_mov_b32 %s, 57344" % sT[1])
    p.e("v_mad_u32_u24 v26, v27, %s, v26" % sT[1])
    h_base(p, sT[0], pr)
    p.e("buffer_load_dword %s, v26, %s, %s offen sc1" % (vJunk, sWS, sT[0]))
def h_base(p, dst, pr):
    p.e("s_mul_i32 %s, %s, 114688" % (dst, sW)); p.e("s_mul_i32 %s, %s, 3584" % (sT[5], sM))
    p.e("s_add_u32 %s, %s, %s" % (dst, dst, sT[5])); p.e("s_add_u32 %s, %s, %s" % (dst, dst, sCl19))
    p.e("s_add_u32 %s, %s, %d" % (dst, dst, OFF_H[pr]))

def pretouch_lin(p):
    p.e("s_cmp_eq_u32 %s, 11" % sM); p.e("s_cselect_b32 %s, 7, %s" % (sP0, sM))
    p.e("s_lshl2_add_u32 %s, %s, %s" % (sP1, sP0, sW)); p.e("s_and_b32 %s, %s, 15" % (sP2, sP1)); p.e("s_lshl_b32 %s, %s, 13" % (sP2, sP2))
    p.e("s_lshr_b32 %s, %s, 4" % (sP1, sP1)); p.e("s_mul_i32 %s, %s, %d" % (sP1, sP1, OFF_X1[0] - OFF_O[0]))
    p.e("s_add_u32 %s, %s, %s" % (sP1, sP1, sP2)); p.e("s_add_u32 %s, %s, %s" % (sP1, sP1, sCl17)); p.e("s_add_u32 %s, %s, %d" % (sP1, sP1, OFF_O[0]))
    p.e("s_cmp_eq_u32 %s, 7" % sM); p.e("s_cselect_b32 %s, 9, %s" % (sP0, sP0))
    p.e("s_cmp_ge_u32 %s, 8" % sP0); p.e("s_cselect_b32 %s, 0x40000000, %s" % (sP1, sP1))
    p.e("v_lshlrev_b32 v30, 7, %s" % vLane)
    p.e("buffer_load_dword %s, v30, %s, %s offen sc1" % (vJunk, sWS, sP1))

def code_touch(p):
    lb = L("Lc")
    p.e("s_getpc_b64 s[92:93]")
    p.e("%s:" % lb)
    p.e("s_sub_u32 s92, s92, %s-Lpc" % lb); p.e("s_subb_u32 s93, s93, 0")
    p.e("s_and_b32 %s, %s, 1" % (sP0, sC)); p.e("s_lshl_b32 %s, %s, 4" % (sP0, sP0)); p.e("s_add_u32 %s, %s, %s" % (sP0, sP0, sM))
    p.e("s_mul_i32 %s, %s, CODE_NL" % (sP0, sP0))
    p.e("v_min_u32 v30, CODE_NL-1, %s" % vLane); p.e("v_add_u32 v30, %s, v30" % sP0); p.e("v_lshlrev_b32 v30, 7, v30")
    p.e("v_min_u32 v30, Lcode_end-Lpc-4, v30")
    p.e("global_load_dword %s, v30, s[92:93]" % vJunk)

def pretouch_flags(p):
    if not OPT["pretouch"]: return
    p.e("v_lshlrev_b32 v26, 15, %s" % vLane)
    p.e("s_lshl_b32 %s, %s, 11" % (sT[0], sC)); p.e("s_lshl_b32 %s, %s, 7" % (sT[1], sM))
    p.e("s_add_u32 %s, %s, %s" % (sT[0], sT[0], sT[1])); p.e("s_add_u32 %s, %s, %d" % (sT[0], sT[0], OFF_FLAG))
    p.e("s_mov_b64 exec, 0x7f")
    p.e("buffer_load_dword %s, v26, %s, %s offen sc1" % (vJunk, sWS, sT[0]))
    p.e("s_mov_b64 exec, -1")

exec(open(__file__.replace("gen.py", "phases.py")).read())

def build():
    p = Prog()
    st = {}
    st['wq'], st['dots1'], st['role'] = startup(p)
    seq = [("p1", 0), ("p2", 0), ("p3", 0), ("p4", 0), ("p1", 1), ("p2", 1), ("p3", 1), ("p4", 1)]
    for n, (ph, pr) in enumerate(seq):
        globals()[ph](p, pr, st)
        if n + 1 >= OPT["stop"]: break
    le, l2 = L(), L()
    p.e("Lfin:")
    if OPT["stamps"] or OPT["stop"] < 8: p.waitall()
    stamp(p, "end"); stamp(p, "R1")
    if OPT["stamps"]:
        p.e("v_lshlrev_b32 v30, 2, %s" % vLane)
        p.e("buffer_store_dword v0, v30, %s, %s offen" % (sWS, sStN))
        p.e("buffer_store_dword v24, v30, %s, %s offen offset:256" % (sWS, sStN))
    if OPT["stop"] < 8:
        p.maybe = "end"; epoch_update(p); p.maybe = False
    p.e("Lend:")
    p.e("s_endpgm")
    p.add(TAILCODE)
    p.e("Lcode_end:")
    return p

def main():
    p = build()
    ins, nn = finalize(p)
    if OPT.get('align', 1):
        import align
        print('align (promoted, still misaligned):', align.align(ins, '.set CODE_NL, 14'))
    n_i = sum(1 for i in ins if i.kind not in ("label", "dir"))
    est = n_i * 7
    hdr = open("cdna_kernels/%s.s.ref" % NAME).read().split("; Override launch")[0]
    out = [hdr.rstrip(), "; Generated by a hand-written python generator (persistent fused kernel).",
           "; @launch grid=(256,1,1) block=(256,1,1) lds=%d" % LDS_BYTES,
           '.amdgcn_target "amdgcn-amd-amdhsa--gfx950"', ".text", ".globl %s_kernel" % NAME, ".p2align 8",
           ".type %s_kernel,@function" % NAME, ".set CODE_NL, %d" % min(64, (n_i * 8 // 128) // 32 + 1), "%s_kernel:" % NAME]
    out += [i.text for i in ins]
    out += ['.section .rodata,"a"', ".p2align 6", ".amdhsa_kernel %s_kernel" % NAME,
            "  .amdhsa_next_free_vgpr 512", "  .amdhsa_next_free_sgpr 102", "  .amdhsa_accum_offset 256",
            "  .amdhsa_group_segment_fixed_size 0", "  .amdhsa_kernarg_size 80", "  .amdhsa_user_sgpr_count 2",
            "  .amdhsa_user_sgpr_kernarg_segment_ptr 1", "  .amdhsa_system_sgpr_workgroup_id_x 1",
            "  .amdhsa_float_denorm_mode_32 3", ".end_amdhsa_kernel", ""]
    open(sys.argv[1], "w").write("\n".join(out))
    open(sys.argv[1] + ".stamps", "w").write("\n".join(STAMPS))
    print("instructions: %d, hazard nops: %d forced bg: %d" % (n_i, nn, FORCED[0]))
main()
```

```python
import sys, math, struct
from asmlib import *

NAME = "interleave_layers__sliding_local_dilated__glu_gated_swiglu__prompt"
OPT = dict(stop=99, stamps=0, forceslow=0, pretouch=1, p1_gap1=72, at_n1=3, post4=3, p1_early1=6, p3_gap1=110, p3_gap0=64, p1_early0=14, at_n0=4, p4_gap=100, g1_bgs0=4, g1_bgs1=24, p3_xa=14, wfp=1, p1_gap0=70, wfl=9, npoll=3, pollgap=7, ctouch=23, hlast0=2, hlast1=2, p3_npk0=2, spread=0, pt=7, hmod0=4, hmod1=4, outmod=1, mid_split=60, hf0=5, hf1=8, p3_x0=5, p4_x0=8, p2_x0=8, p1_x0=4)
for a in sys.argv[2:]:
    k_, v_ = a.split("="); OPT[k_] = int(v_, 0)

def f2u(x): return struct.unpack("<I", struct.pack("<f", x))[0]

OFF_EPOCH = 0; OFF_EG = 4096; OFF_HELLO = 0x2000; OFF_FLAG = 0x10000; OFF_HFLAG = 0x48000
OFF_WF1 = 0x50000; OFF_WF2 = 0x58000; OFF_STAMP = 0x60000
OFF_PWQ = 0x100000; OFF_PWO = 0x250000; OFF_PW13 = 0x2C0000; OFF_PW2 = 0x5D0000
OFF_CQ = 0x760000; OFF_C13 = 0x780000
ALIAS = OPT.get('alias', 1)
OFF_O = [0x800000, 0xC00000 if ALIAS else 0xA00000]; OFF_X1 = [0xC00000, 0x800000 if ALIAS else 0xE00000]; OFF_X2 = 0x800000 if ALIAS else 0x1000000
OFF_HALO = 0x1200000; OFF_H = [0x1400000, 0x1400000 if ALIAS else 0x1C00000]; WS_USED = 0x2400000
XST = 114688
HST = 14336
L_PWQ = 0; L_PWO = 86016; L_X = 151552; L_TAB = 159744
L_CQ = L_TAB; L_C13 = L_TAB + 512; L_MEAN = L_TAB + 1536; L_RSTD = L_TAB + 2176; L_HSP = L_TAB + 2816
L_TP = [[28672, 57344, 0, 86016, 114688, 28672, 57344], [0, 28672, 57344, 86016, 114688, 0, 28672]]
L_DUM = [L_TAB + 2048, L_TAB + 2048]; L_HP = 0; L_RED = 110592
L_ROLE = 49152; L_RES = L_X; OFFL = OPT.get('offload', 0); L_R4 = 100352 if OFFL else L_ROLE + 16384; L_R1 = 81920 if OFFL else L_ROLE + 24576; L_R1B = 108544 if OFFL else L_R1 + 4096; L_HXP = [L_PWO, L_PWO + 49152]
def L_WQ(s): return 114688 + s * 6144 if s < 6 else (s - 6) * 6144
LDS_BYTES = 163840
sWS = "s[24:27]"; sX = "s[28:31]"; sOUT = "s[32:35]"; sRAW = "s[36:39]"; sRAW2 = "s[40:43]"
sC, sM, sW, sCB, sTH, sE, sEn, sEg, sFast, sIdle = ["s%d" % i for i in range(44, 54)]
sT = ["s%d" % i for i in range(54, 60)]
sCl17, sCl19, sBud, sXcc = "s60", "s61", "s62", "s63"
M_OWN = ["s[%d:%d]" % (64 + 2 * r, 65 + 2 * r) for r in range(4)]
M_PRV = ["s[%d:%d]" % (72 + 2 * r, 73 + 2 * r) for r in range(4)]
M_PR0 = ["s[%d:%d]" % (80 + 2 * r, 81 + 2 * r) for r in range(4)]
sPWQ, sPWO, sPW13, sPW2 = "s88", "s89", "s90", "s91"
sD0, sD1, sD2 = "s92", "s93", "s94"
sW7k, sW4k, sQs, sPWQ7, sQm, sKey, sPW137, sBG, sB2 = ["s%d" % i for i in range(4, 13)]
sWQr, sW3r, sW1r, sW2r, sWOr = "s[36:39]", "s[40:43]", "s[88:91]", "s[12:15]", "s[16:19]"
sRB = "s3"; sM3 = "s[20:21]"; sPoll = sFast; sF0, sF1 = "s22", "s23"
sN = ["s%d" % i for i in range(36, 44)]
sA0, sA1 = "s95", "s96"
sStamp = "s[98:99]"; sStN = "s97"
vLane, vL0, vL64, vL128, vNinf, vL15, vG = "v1", "v2", "v3", "v4", "v5", "v6", "v7"
RES = 8
vPoll, vPo, vTag, vWo = "v16", "v17", "v18", "v19"
vOnes = 20
vJunk = "v16"
vStat = "v25"
vT = ["v%d" % i for i in range(26, 32)]

def V(n, cnt=1): return "v%d" % n if cnt == 1 else "v[%d:%d]" % (n, n + cnt - 1)
def A(n, cnt=1): return "a%d" % n if cnt == 1 else "a[%d:%d]" % (n, n + cnt - 1)
def lds(addr):
    b = addr >> 16
    return (vL0, vL64, vL128)[b], addr & 0xFFFF
_lab = [0]
def L(p="L"):
    _lab[0] += 1; return "%s%d" % (p, _lab[0])

STAMPS = []
def stamp(p, name):
    if not OPT["stamps"]: return
    idx = len(STAMPS); STAMPS.append(name); assert idx < 128
    p.e("%s %s" % ("s_memrealtime" if name.startswith("R") else "s_memtime", sStamp))
    p.e("s_waitcnt lgkmcnt(0)")
    p.e("v_writelane_b32 v%d, s98, %d" % (0 if idx < 64 else 24, idx % 64))

def stamp3(p, name):
    if OPT['stamps'] >= 3: stamp(p, name)

def stamp2(p, name):
    if OPT['stamps'] >= 2: stamp(p, name)

def dma_linear(p, sbase, src_const, lds_addr, nfr, mods=""):
    per = nfr // 4; assert per * 4 == nfr
    toks = []
    p.e("s_mul_i32 %s, %s, %d" % (sD0, sW, per * 1024))
    p.e("s_add_u32 %s, %s, %s" % (sD1, sD0, sbase))
    for g0 in range(0, per, 4):
        p.e("s_add_u32 m0, %s, %d" % (sD0, lds_addr + g0 * 1024))
        p.e("s_add_u32 %s, %s, %d" % (sD2, sD1, src_const + g0 * 1024))
        for u in range(min(4, per - g0)):
            toks.append(p.e("buffer_load_dwordx4 %s, %s, %s offen offset:%d %s lds" % (vL0, sWS, sD2, u * 1024, mods)))
    return toks

def poll(p, soff, stag, voff, out=None, mid=None):
    lp, ld = L("Lp"), L("Ld")
    old = p.maybe; p.maybe = old or "poll"
    if mid:
        p.e("buffer_load_dword %s, %s, %s, %s offen sc1" % (vPoll, voff, sWS, soff))
        mid(p)
        p.e("s_waitcnt vmcnt(0)")
        p.e("v_cmp_ne_u32 vcc, %s, %s" % (stag, vPoll))
        p.e("s_cbranch_vccz %s" % (out or ld))
    NPI = OPT.get("npoll", 1) if out else 1
    if NPI > 1:
        regs = [vPoll, "v30", "v31"][:NPI]
        for k, r in enumerate(regs):
            p.e("buffer_load_dword %s, %s, %s, %s offen sc1" % (r, voff, sWS, soff))
            if k < NPI - 1: p.e("s_nop %d" % OPT.get("pollgap", 15))
        p.e("%s:" % lp)
        for r in regs:
            p.e("s_waitcnt vmcnt(%d)" % (NPI - 1))
            p.e("v_cmp_ne_u32 vcc, %s, %s" % (stag, r))
            p.e("s_cbranch_vccz %s" % out)
            p.e("buffer_load_dword %s, %s, %s, %s offen sc1" % (r, voff, sWS, soff))
    else:
        p.e("%s:" % lp)
        p.e("buffer_load_dword %s, %s, %s, %s offen sc1" % (vPoll, voff, sWS, soff))
        p.e("s_waitcnt vmcnt(0)")
        p.e("v_cmp_ne_u32 vcc, %s, %s" % (stag, vPoll))
        p.e("s_cbranch_vccz %s" % (out or ld))
    p.e("s_sub_u32 %s, %s, 1" % (sBud, sBud))
    p.e("s_cbranch_scc0 %s" % lp)
    p.e("s_mov_b32 %s, 0" % sBud)
    p.e("%s:" % ld)
    p.maybe = old

def flag_store(p, soff, stag, sc1):
    p.e("v_mov_b32 %s, %s" % (vTag, stag))
    p.e("s_mov_b64 exec, 1")
    p.e("buffer_store_dword %s, off, %s, %s %s" % (vTag, sWS, soff, "sc1" if sc1 else ""))
    p.e("s_mov_b64 exec, -1")

def xgroup_reduce(p, regs, op, tmp):
    for perm in ("v_permlane16_swap_b32", "v_permlane32_swap_b32"):
        for r, t in zip(regs, tmp): p.e("v_mov_b32 %s, %s" % (t, r))
        for r, t in zip(regs, tmp): p.e("%s %s, %s" % (perm, r, t))
        for r, t in zip(regs, tmp): p.e("%s %s, %s, %s" % (op, r, r, t))

def finish_stats(p, s1, s2, nmean, rstd, tmp):
    p.e("v_mul_f32 %s, 0x%x, %s" % (nmean, f2u(-1.0 / 448), s1))
    p.e("v_mul_f32 %s, %s, %s" % (tmp, nmean, nmean))
    p.e("v_fma_f32 %s, %s, %s, -%s" % (tmp, s2, sInv448, tmp))
    p.e("v_max_f32 %s, 0, %s" % (tmp, tmp))
    p.e("v_add_f32 %s, 0x%x, %s" % (tmp, f2u(1e-5), tmp))
    p.e("v_rsq_f32 %s, %s" % (rstd, tmp))
sInv448 = "s100"; sH = "s101"; sSlowOff = "s63"
HEADMAP = [0, 7, 14, 5, 12, 3, 10, 2, 4, 6, 9, 1, 8, 15, 11, 13] if OPT.get("hmap", 1) else list(range(16))

def startup(p):
    p.e("s_cmp_ge_u32 s2, 256")
    p.e("s_cbranch_scc1 Lend")
    if OPT["stamps"]:
        p.e("s_memrealtime s[64:65]"); p.e("s_memtime s[66:67]")
    k1 = p.e("s_load_dwordx16 s[4:19], s[0:1], 0")
    k2 = p.e("s_load_dwordx4 s[20:23], s[0:1], 64")
    p.e("s_getpc_b64 s[36:37]")
    p.e("Lpc:")
    p.e("s_lshr_b32 %s, s2, 3" % sT[0])
    p.e("v_and_b32 %s, 63, v0" % vLane)
    p.e("v_lshrrev_b32 v26, 6, v0")
    p.e("s_mul_i32 %s, %s, CODE_NL" % (sT[1], sT[0]))
    p.e("v_min_u32 v27, CODE_NL-1, %s" % vLane)
    p.e("v_add_u32 v27, %s, v27" % sT[1])
    p.e("v_lshlrev_b32 v27, 7, v27")
    p.e("v_min_u32 v27, Lcode_end-Lpc-4, v27")
    p.e("v_readfirstlane_b32 %s, v26" % sW)
    p.e("global_load_dword %s, v27, s[36:37]" % vJunk)
    p.e("s_and_b32 %s, s2, 7" % sT[1])
    p.e("s_lshr_b32 %s, %s, 4" % (sC, sT[0]))
    p.e("s_lshl1_add_u32 %s, %s, %s" % (sC, sT[1], sC))
    p.e("s_and_b32 %s, %s, 15" % (sM, sT[0]))
    hk = sum(h << (4 * i) for i, h in enumerate(HEADMAP))
    p.e("s_mov_b32 s70, 0x%x" % (hk & 0xFFFFFFFF)); p.e("s_mov_b32 s71, 0x%x" % (hk >> 32))
    p.e("s_lshl_b32 %s, %s, 2" % (sT[1], sM)); p.e("s_lshr_b64 s[70:71], s[70:71], %s" % sT[1]); p.e("s_and_b32 %s, s70, 15" % sH)
    p.e("s_cmp_ge_u32 %s, 7" % sM)
    p.e("s_cselect_b32 %s, 1, 0" % sTH)
    p.e("s_cselect_b32 %s, 7, 0" % sT[1])
    p.e("s_sub_u32 %s, %s, %s" % (sCB, sM, sT[1]))
    p.e("s_cmp_ge_u32 %s, 14" % sM)
    p.e("s_cselect_b32 %s, 1, 0" % sIdle)
    p.e("s_cselect_b32 %s, 7, 0" % sT[1])
    p.e("s_sub_u32 %s, %s, %s" % (sCB, sCB, sT[1]))
    p.e("v_lshlrev_b32 %s, 4, %s" % (vL0, vLane))
    p.e("v_and_b32 %s, 15, %s" % (vL15, vLane))
    p.e("v_lshrrev_b32 %s, 4, %s" % (vG, vLane))
    p.e("v_lshrrev_b32 v28, 3, %s" % vLane)
    p.e("v_and_b32 v29, 7, %s" % vLane)
    p.e("v_lshlrev_b32 v29, 4, v29")
    p.wait(k1, k2)
    if OPT["stamps"]:
        p.e("s_memtime s[68:69]"); p.e("s_waitcnt lgkmcnt(0)")
    if OPT.get("wsbase", 0):
        p.e("s_add_u32 s22, s22, 0x%x" % (OPT["wsbase"] << 20)); p.e("s_addc_u32 s23, s23, 0")
    for srd, lo, size in ((24, 22, WS_USED), (28, 4, 1835008), (32, 18, 1835008)):
        p.e("s_mov_b32 s%d, s%d" % (srd, lo)); p.e("s_mov_b32 s%d, s%d" % (srd + 1, lo + 1))
        p.e("s_mov_b32 s%d, 0x%x" % (srd + 2, size)); p.e("s_mov_b32 s%d, 0x20000" % (srd + 3))
    def srd(n, lo, size):
        p.e("s_mov_b32 s%d, s%d" % (n, lo)); p.e("s_mov_b32 s%d, s%d" % (n + 1, lo + 1))
        p.e("s_mov_b32 s%d, %d" % (n + 2, size)); p.e("s_mov_b32 s%d, 0x20000" % (n + 3))
    srd(36, 6, 1204224)
    if OPT.get("xtouch", 1):
        p.e("s_lshl2_add_u32 %s, %s, %s" % (sT[0], sM, sW)); p.e("s_lshl_b32 %s, %s, 11" % (sT[0], sT[0]))
        p.e("s_mul_i32 %s, %s, 114688" % (sT[1], sC)); p.e("s_add_u32 %s, %s, %s" % (sT[0], sT[0], sT[1]))
        p.e("s_sub_u32 %s, %s, 14336" % (sT[1], sT[0])); p.e("s_cselect_b32 %s, %s, %s" % (sT[0], sT[0], sT[1]))
        p.e("v_lshlrev_b32 v30, 7, %s" % vL15)
        p.e("s_mov_b64 exec, 0xffff")
        p.e("buffer_load_dword %s, v30, %s, %s offen" % (vJunk, sX, sT[0]))
        p.e("s_mov_b64 exec, -1")
    p.e("s_lshl_b32 %s, %s, 7" % (sT[0], sC))
    p.e("s_lshl_b32 %s, %s, 5" % (sT[1], sW))
    p.e("s_add_u32 %s, %s, %s" % (sT[1], sT[1], sT[0]))
    p.e("s_mul_i32 %s, %s, 896" % (sA0, sT[1]))
    p.e("s_mul_i32 %s, %s, 28672" % (sA1, sW))
    p.e("v_and_b32 v25, 7, %s" % vLane)
    p.e("v_xor_b32 v25, v25, v28")
    p.e("v_lshlrev_b32 v25, 4, v25")
    p.e("s_movk_i32 %s, 896" % sT[2])
    p.e("v_mad_u32_u24 v25, v28, %s, v25" % sT[2])
    xd = []
    def xdma(i):
        rb, lc = i // 7, i % 7
        if lc == 0 and rb: p.e("s_add_u32 %s, %s, 7168" % (sA0, sA0))
        p.e("s_add_u32 m0, %s, %d" % (sA1, i * 1024 - lc * 128))
        xd.append(p.e("buffer_load_dwordx4 v25, %s, %s offen offset:%d lds" % (sX, sA0, lc * 128)))
    srd(40, 14, 1605632); srd(88, 12, 1605632); srd(12, 16, 1605632); srd(16, 8, 401408)
    def wtouch(lst, p=p):
        p.e("s_lshl2_add_u32 %s, s2, %s" % (sT[0], sW))
        p.e("v_lshlrev_b32 v30, 7, %s" % vLane)
        for sr, n in lst:
            p.e("s_mul_i32 %s, %s, %d" % (sT[1], sT[0], n * 128))
            p.e("s_mov_b64 exec, 0x%x" % ((1 << n) - 1))
            p.e("buffer_load_dword %s, v30, %s, %s offen" % (vJunk, sr, sT[1]))
        p.e("s_mov_b64 exec, -1")
    low = [(sW1r, 13), (sW3r, 13), (sWOr, 4), (sW2r, 13)]
    TM = OPT.get("tmode", 3)
    if TM in (1, 3): wtouch([(sWQr, 10)])
    if TM == 2: wtouch([(sWQr, 10)] + low)
    if OPT["stamps"]:
        p.e("s_lshl_b32 %s, s2, 2" % sStN); p.e("s_add_u32 %s, %s, %s" % (sStN, sStN, sW))
        p.e("s_lshl_b32 %s, %s, 9" % (sStN, sStN)); p.e("s_add_u32 %s, %s, %d" % (sStN, sStN, OFF_STAMP))
        for nm_, sr in (("entry", "s66"), ("R0", "s64"), ("S.karg", "s68")):
            idx = len(STAMPS); STAMPS.append(nm_)
            p.e("v_writelane_b32 v0, %s, %d" % (sr, idx))
    p.e("s_lshl_b32 %s, %s, 7" % (sT[0], sC))
    p.e("s_lshl_b32 %s, %s, 7" % (sT[1], sCB))
    p.e("s_add_u32 %s, %s, %d" % (sT[1], sT[1], OFF_EG))
    p.e("s_add_u32 %s, %s, 128" % (sT[2], sT[0]))
    e1 = p.e("s_load_dword %s, s[22:23], %s" % (sE, sT[0]))
    e2 = p.e("s_load_dword %s, s[22:23], %s" % (sEn, sT[2]))
    e3 = p.e("s_load_dword %s, s[22:23], %s" % (sEg, sT[1]))
    p.e("s_lshr_b32 %s, %s, 1" % (sT[0], sW)); p.e("s_mul_i32 %s, %s, 192" % (sT[1], sT[0]))
    p.e("s_mul_i32 %s, %s, 56" % (sT[2], sH)); p.e("s_movk_i32 %s, 2688" % sT[3]); p.e("s_movk_i32 %s, 896" % sT[4])
    for u in range(3):
        r = 244 + u
        p.e("v_add_u32 v26, %s, %s" % (sT[1], vLane))
        if u: p.e("v_add_u32 v26, %d, v26" % (64 * u))
        p.e("v_mul_u32_u24 v27, 5462, v26"); p.e("v_lshrrev_b32 v27, 16, v27")
        p.e("v_mul_u32_u24 v28, 12, v27"); p.e("v_sub_u32 v26, v26, v28")
        p.e("v_lshrrev_b32 v28, 2, v27"); p.e("v_lshrrev_b32 v29, 3, v27"); p.e("v_xor_b32 v28, v28, v29")
        p.e("v_and_b32 v28, 1, v28"); p.e("v_lshlrev_b32 v28, 1, v28"); p.e("v_xor_b32 v26, v26, v28")
        p.e("v_lshrrev_b32 v28, 2, v26"); p.e("v_and_b32 v26, 3, v26")
        p.e("v_lshl_add_u32 v26, v26, 4, %s" % sT[2])
        p.e("v_mad_u32_u24 v26, v28, %s, v26" % sT[4])
        p.e("v_mad_u32_u24 v%d, v27, %s, v26" % (r, sT[3]))
        if u: p.e("v_subrev_u32 v%d, %d, v%d" % (r, 1024 * u, r))
    p.e("s_and_b32 %s, %s, 1" % (sT[1], sW))
    p.e("s_mul_i32 %s, %s, 86016" % (sQs, sT[1]))
    p.e("s_mul_i32 %s, %s, 6144" % (sQm, sT[1])); p.e("s_mul_i32 %s, %s, 3072" % (sT[0], sT[0])); p.e("s_add_u32 %s, %s, %s" % (sQm, sQm, sT[0]))
    p.e("v_add_u32 %s, 0x10000, %s" % (vL64, vL0))
    p.e("v_add_u32 %s, 0x20000, %s" % (vL128, vL0))
    p.e("v_mov_b32 %s, 0xff800000" % vNinf)
    p.e("v_mov_b32 %s, 0" % vPo)
    for i in range(4): p.e("v_mov_b32 v%d, 0x3f803f80" % (vOnes + i))
    p.e("s_mov_b32 %s, 0x%x" % (sInv448, f2u(1.0 / 448)))
    p.e("s_lshl_b32 %s, %s, 17" % (sCl17, sC))
    p.e("s_lshl_b32 %s, %s, 19" % (sCl19, sC))
    p.e("s_mov_b32 %s, 60000" % sBud)
    p.e("s_mov_b32 s20, 0"); p.e("s_mov_b32 s21, 0xffff0000")
    for r in range(4):
        p.e("v_lshl_add_u32 v26, %s, 2, %d" % (vG, r))
        p.e("v_sub_u32 v27, %s, v26" % vL15)
        p.e("v_and_b32 v28, 1, v27")
        p.e("v_cmp_eq_u32 vcc, 0, v28")
        p.e("v_cmp_le_i32_e64 %s, 0, v27" % M_OWN[r])
        p.e("v_cmp_ge_i32_e64 %s, -2, v27" % M_PRV[r])
        p.e("s_and_b64 %s, %s, vcc" % (M_OWN[r], M_OWN[r]))
        p.e("s_and_b64 %s, %s, vcc" % (M_PRV[r], M_PRV[r]))
    p.e("s_or_b32 %s, %s, %s" % (sT[0], sC, sW))
    p.e("s_cmp_eq_u32 %s, 0" % sT[0])
    for r in range(4): p.e("s_cselect_b64 %s, 0, %s" % (M_PR0[r], M_PRV[r]))
    stamp(p, "S.const")
    p.wait(e1, e2, e3)
    for s in (sE, sEn, sEg):
        p.e("s_mul_i32 %s, %s, 0x9e3779b1" % (s, s)); p.e("s_add_u32 %s, %s, 0x7f4a7c15" % (s, s))
    lh = L()
    p.e("s_getreg_b32 %s, hwreg(HW_REG_XCC_ID)" % sXcc)
    p.e("s_and_b32 %s, %s, 15" % (sXcc, sXcc))
    p.e("s_andn2_b32 %s, %s, 15" % (sT[0], sE))
    p.e("s_or_b32 %s, %s, %s" % (sXcc, sXcc, sT[0]))
    p.e("s_mov_b32 %s, 2" % sFast)
    p.e("s_cmp_lg_u32 %s, 3" % sW); p.e("s_cbranch_scc1 %s" % lh)
    p.maybe = "h"
    p.e("s_lshl_b32 %s, %s, 11" % (sT[0], sC)); p.e("s_lshl_b32 %s, %s, 7" % (sT[1], sM))
    p.e("s_add_u32 %s, %s, %s" % (sT[0], sT[0], sT[1])); p.e("s_add_u32 %s, %s, %d" % (sT[0], sT[0], OFF_HELLO))
    flag_store(p, sT[0], sXcc, True)
    p.maybe = False
    p.e("%s:" % lh)
    p.e("v_and_b32 v80, 7, %s" % vLane)
    p.e("v_bfe_u32 v81, %s, 3, 1" % vLane)
    p.e("v_xor_b32 v82, %s, v80" % vG)
    p.e("v_lshlrev_b32 v82, 4, v82")
    p.e("v_lshl_add_u32 v82, v80, 7, v82")
    p.e("s_movk_i32 %s, 7168" % sT[2])
    p.e("v_mad_u32_u24 v82, v81, %s, v82" % sT[2])
    p.e("v_add_u32 v82, %s, v82" % sA1)
    p.e("v_xor_b32 v83, 64, v82")
    def dots(j):
        q = Prog()
        for i in range(56):
            reg = 128 + 56 * j + i
            q.e("v_dot2_f32_bf16 v%d, v%d, v%d, %s" % (96 + 2 * j, reg, vOnes, "0" if i == 0 else "v%d" % (96 + 2 * j)))
            q.e("v_dot2_f32_bf16 v%d, v%d, v%d, %s" % (97 + 2 * j, reg, reg, "0" if i == 0 else "v%d" % (97 + 2 * j)))
        return q.ins
    def xreads(j):
        return [p.e("ds_read_b128 %s, v%d offset:%d" % (V(128 + (j * 14 + s_) * 4, 4), 82 + (s_ & 1), j * 14336 + (s_ >> 1) * 1024)) for s_ in range(14)]
    bg = BGQ
    for i in range(28): xdma(i)
    wq = [rawq(p, 0)]
    stamp(p, "S.xiss")
    p.wait(xd[:14]); r0 = xreads(0)
    wq += [rawq_bg(bg, ch) for ch in range(1, OPT.get('nwa', 3))]
    if TM == 1:
        q = Prog(); wtouch(low, q); bg.append(Item(q.ins))
    if TM == 3:
        q = Prog(); wtouch([(sWOr, 4)], q); bg.append(Item(q.ins))
    bg.pt(p, 3)
    p.wait(r0)
    p.add(spr(dots(0), bg, OPT.get("tail_gap", 100)))
    while bg: bg.pt(p)
    p.wait(xd)
    stamp(p, "S.xin")
    xreads(1)
    p.e("v_lshrrev_b32 v28, 3, %s" % vLane)
    p.e("v_and_b32 v29, 7, %s" % vLane)
    p.e("v_lshrrev_b32 v26, 4, %s" % vLane); p.e("v_lshlrev_b32 v26, 1, v26"); p.e("v_xor_b32 v26, v26, v29")
    p.e("v_lshlrev_b32 v26, 4, v26"); p.e("s_movk_i32 %s, 896" % sT[2]); p.e("v_mad_u32_u24 %s, v28, %s, v26" % (vWo, sT[2]))
    p.e("v_lshlrev_b32 v29, 4, v29")
    p.e("v_mad_u32_u24 v127, v28, %s, v29" % sT[2])
    p.e("s_movk_i32 %s, 3584" % sT[2]); p.e("v_mad_u32_u24 v126, v28, %s, v29" % sT[2])
    p.e("s_mul_i32 %s, %s, 224" % (sRB, sM)); p.e("s_mul_i32 %s, %s, 114688" % (sT[1], sC)); p.e("s_add_u32 %s, %s, %s" % (sRB, sRB, sT[1]))
    p.e("s_add_u32 %s, %s, %s" % (sRB, sRB, sA1))
    p.e("s_lshl1_add_u32 s22, %s, %s" % (sC, sTH)); p.e("s_mul_i32 s22, s22, 57344")
    p.e("s_lshl_b32 %s, %s, 7" % (sT[1], sCB)); p.e("s_add_u32 s22, s22, %s" % sT[1])
    p.e("s_mul_i32 %s, %s, 7168" % (sT[1], sW)); p.e("s_add_u32 s22, s22, %s" % sT[1])
    p.e("s_cmp_lg_u32 %s, 0" % sIdle); p.e("s_cselect_b32 s22, 0x40000000, s22")
    p.e("s_cmp_ge_u32 %s, 14" % sC); p.e("s_cselect_b32 s22, 0x40000000, s22"); p.e("s_cselect_b32 %s, 0x40000000, %s" % (sRB, sRB))
    if OFFL:
        p.e("s_add_u32 s2, %s, %d" % (sRB, 7 * 224)); p.e("s_cmp_ge_u32 %s, 4" % sM); p.e("s_cselect_b32 s2, 0x40000000, s2")
        p.e("s_sub_u32 %s, %s, 7" % (sT[1], sM)); p.e("s_cmp_lt_u32 %s, 4" % sT[1]); p.e("s_cselect_b32 %s, 0x40000000, %s" % (sRB, sRB))
    p.e("s_lshl_b32 s23, %s, 10" % sW)
    p.e("s_mul_i32 s9, %s, 86016" % sC); p.e("s_mul_i32 %s, %s, 21504" % (sT[1], sW)); p.e("s_add_u32 s9, s9, %s" % sT[1])
    p.e("s_cmp_ge_u32 %s, 14" % sC); p.e("s_cselect_b32 s9, 0x40000000, s9")
    p.e("v_lshrrev_b32 v26, 2, %s" % vL15); p.e("v_and_b32 v27, 3, %s" % vLane); p.e("s_movk_i32 %s, 896" % sT[2])
    p.e("v_mul_u32_u24 v247, 2688, %s" % vG); p.e("v_lshl_add_u32 v247, v27, 4, v247"); p.e("v_mad_u32_u24 v247, v26, %s, v247" % sT[2])
    p.e("s_mul_i32 %s, %s, 56" % (sT[0], sH)); p.e("v_add_u32 v247, %s, v247" % sT[0])
    p.e("v_cmp_eq_u32 vcc, 3, v26"); p.e("v_bfrev_b32 v31, 1"); p.e("v_cndmask_b32 v247, v247, v31, vcc")
    p.waitall(vm=False)
    p.e("s_barrier")
    role = []
    for half in range(2):
        for mat, sr in enumerate((sW1r, sW3r)):
            q = Prog()
            q.e("s_add_u32 m0, s23, %d" % (L_ROLE + half * 8192 + mat * 4096 - half * 128))
            q.e("buffer_load_dwordx4 v126, %s, %s offen offset:%d nt lds" % (sr, sRB, half * 128))
            role.append(Item(q.ins))
            if OFFL:
                q = Prog()
                q.e("s_add_u32 m0, s23, %d" % (L_ROLE + 16384 + half * 8192 + mat * 4096 - half * 128))
                q.e("buffer_load_dwordx4 v126, %s, s2 offen offset:%d nt lds" % (sr, half * 128))
                role.append(Item(q.ins))
    for u in range(2):
        q = Prog()
        q.e("s_add_u32 m0, s23, %d" % (L_R4 + u * 4096))
        if u: q.e("s_add_u32 s22, s22, 28672")
        q.e("buffer_load_dwordx4 v127, %s, s22 offen nt lds" % sW2r)
        role.append(Item(q.ins))
    for u in range(2):
        q = Prog()
        q.e("s_cmp_ge_u32 %s, 2" % sW); q.e("s_cselect_b32 %s, %d, 0" % (sBG, L_R1B - L_R1 - 4096)); q.e("s_lshl1_add_u32 %s, s23, %s" % (sBG, sBG))
        q.e("s_add_u32 m0, %s, %d" % (sBG, L_R1 + u * 1024))
        if u: q.e("s_add_u32 s9, s9, 10752")
        q.e("buffer_load_dwordx4 v247, %s, s9 offen lds" % sWQr)
        role.append(Item(q.ins))
    pp_ = p; p = Prog()
    p.e("s_mul_i32 %s, %s, 86016" % (sPWQ, sM)); p.e("s_add_u32 %s, %s, %d" % (sPWQ, sPWQ, OFF_PWQ))
    p.e("s_mul_i32 %s, %s, 200704" % (sPW13, sM)); p.e("s_add_u32 %s, %s, %d" % (sPW13, sPW13, OFF_PW13))
    p.e("s_mul_i32 %s, %s, 229376" % (sPW2, sCB)); p.e("s_mul_i32 %s, %s, 57344" % (sT[0], sW))
    p.e("s_add_u32 %s, %s, %s" % (sPW2, sPW2, sT[0])); p.e("s_add_u32 %s, %s, %d" % (sPW2, sPW2, OFF_PW2))
    p.e("s_mul_i32 %s, %s, 7168" % (sW7k, sW)); p.e("s_lshl_b32 %s, %s, 12" % (sW4k, sW))
    p.e("s_add_u32 %s, %s, %s" % (sPWQ7, sPWQ, sW7k)); p.e("s_add_u32 %s, %s, %s" % (sPW137, sPW13, sW7k))
    p.e("s_mul_i32 %s, %s, 25088" % (sPWO, sW)); p.e("s_lshl_b32 %s, %s, 7" % (sT[0], sCB)); p.e("s_add_u32 %s, %s, %s" % (sPWO, sPWO, sT[0]))
    p.e("s_cmp_lg_u32 %s, 0" % sIdle)
    p.e("s_cselect_b32 %s, 0x40000000, %s" % (sPWO, sPWO)); p.e("s_cselect_b32 %s, 0x40000000, %s" % (sPW2, sPW2))
    role.append(Item(p.ins)); p = pp_
    stamp(p, "S.role2")
    return wq, dots(1), role

def rawq_bg(bg, ch):
    q = Prog(); t = rawq(q, ch)
    bg.append(Item(q.ins[:3]))
    for k in (3, 4):
        it = Item([q.ins[k]]); it.cont = True; bg.append(it)
    return t

def rawq(p, ch):
    p.e("s_add_u32 m0, %s, %d" % (sQm, L_WQ(2 * ch)))
    p.e("s_add_u32 %s, %s, %d" % (sBG, sQs, ch * 172032))
    return [p.e("buffer_load_dwordx4 v%d, %s, %s offen offset:%d lds" % (244 + u, sWQr, sBG, u * 1024)) for u in range(3)]

def repack(p):
    sa, sb, sc_, sd, se, sf = "s40", "s41", "s42", "s43", "s22", "s23"
    p.e("v_lshrrev_b32 v26, 2, %s" % vL15)
    p.e("v_and_b32 v27, 3, %s" % vLane)
    p.e("v_lshlrev_b32 v27, 3, v27")
    p.e("v_lshrrev_b32 v30, 1, %s" % vG)
    p.e("v_and_b32 v29, 1, %s" % vG)
    p.e("v_lshl_add_u32 v28, v30, 2, v26")
    p.e("v_lshl_add_u32 v28, v28, 7, v27")
    p.e("v_lshl_add_u32 v28, v29, 12, v28")
    p.e("s_lshr_b32 %s, %s, 1" % (sT[0], sW)); p.e("s_and_b32 %s, %s, 1" % (sT[1], sW)); p.e("s_lshl_b32 %s, %s, 6" % (sT[1], sT[1]))
    p.e("s_lshl_b32 %s, %s, 13" % (sT[2], sT[0])); p.e("s_add_u32 %s, %s, %s" % (sT[2], sT[2], sT[1])); p.e("s_add_u32 %s, %s, %d" % (sT[2], sT[2], L_ROLE))
    p.e("v_add_u32 v28, %s, v28" % sT[2])
    for i in range(2):
        for pp in range(2):
            f = 32 + (i * 2 + pp) * 4
            p.e("ds_read_b64_tr_b16 %s, v28 offset:%d" % (A(f, 2), pp * 1024 + i * 32))
            p.e("ds_read_b64_tr_b16 %s, v28 offset:%d" % (A(f + 2, 2), pp * 1024 + i * 32 + 2048))
            if OFFL:
                p.e("ds_read_b64_tr_b16 %s, v28 offset:%d" % (A(f + 64, 2), 16384 + pp * 1024 + i * 32))
                p.e("ds_read_b64_tr_b16 %s, v28 offset:%d" % (A(f + 66, 2), 16384 + pp * 1024 + i * 32 + 2048))
    p.e("v_lshl_add_u32 v30, v30, 4, v26")
    p.e("v_lshl_add_u32 v30, v29, 2, v30")
    p.e("v_lshl_add_u32 v30, v30, 7, v27")
    p.e("s_lshl_b32 %s, %s, 12" % (sT[2], sT[0])); p.e("s_add_u32 %s, %s, %s" % (sT[2], sT[2], sT[1])); p.e("s_add_u32 %s, %s, %d" % (sT[2], sT[2], L_R4))
    p.e("v_add_u32 v30, %s, v30" % sT[2])
    for t in range(2):
        p.e("ds_read_b64_tr_b16 %s, v30 offset:%d" % (A(48 + 4 * t, 2), t * 32))
        p.e("ds_read_b64_tr_b16 %s, v30 offset:%d" % (A(50 + 4 * t, 2), t * 32 + 1024))
    p.e("v_lshl_add_u32 v31, %s, 3, v26" % vG); p.e("v_lshl_add_u32 v31, v31, 8, v27")
    p.e("s_lshl_b32 %s, %s, 6" % (sT[2], sW)); p.e("s_add_u32 %s, %s, %d" % (sT[2], sT[2], L_R1)); p.e("v_add_u32 v31, %s, v31" % sT[2])
    p.e("v_lshrrev_b32 v26, 1, %s" % vG); p.e("s_mov_b32 %s, %d" % (sT[2], L_R1B - L_R1 - 4096)); p.e("v_mad_u32_u24 v31, v26, %s, v31" % sT[2])
    for t in range(2):
        p.e("ds_read_b64_tr_b16 %s, v31 offset:%d" % (A(56 + 4 * t, 2), t * 32))
        p.e("ds_read_b64_tr_b16 %s, v31 offset:%d" % (A(58 + 4 * t, 2), t * 32 + 1024))
    if OPT.get("twopass", 0):
        p.e("s_lshl_b32 %s, %s, 12" % (se, sC)); p.e("s_lshl_b32 %s, %s, 11" % (sT[1], sW)); p.e("s_add_u32 %s, %s, %s" % (se, se, sT[1])); p.e("s_sub_u32 %s, %s, 2048" % (se, se))
        p.e("s_lshl_b32 %s, %s, 11" % (sT[1], sC)); p.e("s_add_u32 %s, %s, 57344" % (sT[1], sT[1]))
        p.e("s_cmp_eq_u32 %s, 0" % sW); p.e("s_cselect_b32 %s, %s, %s" % (se, sT[1], se))
    else:
        p.e("s_mul_i32 %s, %s, 6144" % (se, sC)); p.e("s_lshl_b32 %s, %s, 11" % (sT[1], sW)); p.e("s_add_u32 %s, %s, %s" % (se, se, sT[1]))
    p.e("s_add_u32 %s, %s, %s" % (se, se, sPWQ))
    p.e("s_mul_i32 %s, %s, 57344" % (sa, sW)); p.e("s_add_u32 %s, %s, %s" % (sa, sa, sPW13))
    p.e("s_lshl_b32 %s, %s, 11" % (sT[1], sC)); p.e("s_add_u32 %s, %s, %s" % (sa, sa, sT[1]))
    p.e("s_add_u32 %s, %s, 28672" % (sb, sa))
    p.e("s_mul_i32 %s, %s, 14" % (sc_, sM)); p.e("s_add_u32 %s, %s, %s" % (sc_, sc_, sC))
    p.e("s_mul_i32 %s, %s, 896" % (sc_, sc_))
    p.e("s_lshl_b32 %s, %s, 8" % (sT[1], sW))
    p.e("s_add_u32 %s, %s, %s" % (sc_, sc_, sT[1])); p.e("s_add_u32 %s, %s, %d" % (sc_, sc_, OFF_C13))
    p.e("s_add_u32 %s, %s, 128" % (sf, sc_))
    p.e("s_lshl1_add_u32 %s, %s, %s" % (sd, sC, sTH)); p.e("s_lshl_b32 %s, %s, 13" % (sd, sd))
    p.e("s_mul_i32 %s, %s, 229376" % (sT[1], sCB)); p.e("s_add_u32 %s, %s, %s" % (sd, sd, sT[1]))
    p.e("s_lshl_b32 %s, %s, 11" % (sT[1], sW)); p.e("s_add_u32 %s, %s, %s" % (sd, sd, sT[1])); p.e("s_add_u32 %s, %s, %d" % (sd, sd, OFF_PW2))
    p.e("s_cmp_ge_u32 %s, 14" % sC)
    for r_ in (sa, sb, sc_, sd, se, sf): p.e("s_cselect_b32 %s, 0x40000000, %s" % (r_, r_))
    p.e("s_cmp_eq_u32 %s, 3" % sW)
    for r_ in (sb, se, sf): p.e("s_cselect_b32 %s, 0x40000000, %s" % (r_, r_))
    p.e("s_cmp_ge_u32 %s, 14" % sM); p.e("s_cselect_b32 %s, 0x40000000, %s" % (sd, sd))
    if OFFL:
        p.e("s_cmp_lt_u32 %s, 4" % sM)
        p.e("s_mov_b32 s2, 0x40000000"); p.e("s_cselect_b32 s3, %d, s2" % (7 * 200704)); p.e("s_cselect_b32 s9, %d, s2" % (7 * 12544))
        p.e("s_sub_u32 %s, %s, 7" % (sT[1], sM)); p.e("s_cmp_lt_u32 %s, 4" % sT[1])
        for r_ in (sa, sb, sc_, sf): p.e("s_cselect_b32 %s, 0x40000000, %s" % (r_, r_))
    p.e("v_lshlrev_b32 v127, 2, %s" % vLane)
    p.waitall(vm=False)
    for i in range(2):
        p.e("v_mfma_f32_32x32x16_bf16 %s, %s, %s, 0" % (A(64 + 16 * i, 16), V(vOnes, 4), A(32 + 8 * i, 4)))
        p.e("v_mfma_f32_32x32x16_bf16 %s, %s, %s, %s" % (A(64 + 16 * i, 16), V(vOnes, 4), A(36 + 8 * i, 4), A(64 + 16 * i, 16)))
    for i in range(2 if OFFL else 0):
        p.e("v_mfma_f32_32x32x16_bf16 %s, %s, %s, 0" % (A(112 + 16 * i, 16), V(vOnes, 4), A(96 + 8 * i, 4)))
        p.e("v_mfma_f32_32x32x16_bf16 %s, %s, %s, %s" % (A(112 + 16 * i, 16), V(vOnes, 4), A(100 + 8 * i, 4), A(112 + 16 * i, 16)))
    items = []
    for r0, so in ((32, sa), (40, sb), (48, sd), (56, se)):
        for k in range(2):
            q = Prog(); q.e("buffer_store_dwordx4 %s, %s, %s, %s offen offset:%d sc1" % (A(r0 + 4 * k, 4), vL0, sWS, so, k * 1024)); items.append(Item(q.ins))
    for r0, so in (((96, sa), (104, sb)) if OFFL else ()):
        for k in range(2):
            q = Prog(); q.e("s_add_u32 %s, %s, s3" % (sP2, so))
            q.e("buffer_store_dwordx4 %s, %s, %s, %s offen offset:%d sc1" % (A(r0 + 4 * k, 4), vL0, sWS, sP2, k * 1024)); items.append(Item(q.ins))
    q = Prog()
    q.e("s_mov_b32 exec_hi, 0")
    q.e("buffer_store_dword a64, v127, %s, %s offen sc1" % (sWS, sc_))
    q.e("buffer_store_dword a80, v127, %s, %s offen sc1" % (sWS, sf))
    if OFFL:
        q.e("s_add_u32 %s, %s, s9" % (sP2, sc_)); q.e("buffer_store_dword a112, v127, %s, %s offen sc1" % (sWS, sP2))
        q.e("s_add_u32 %s, %s, s9" % (sP2, sf)); q.e("buffer_store_dword a128, v127, %s, %s offen sc1" % (sWS, sP2))
    q.e("s_mov_b32 exec_hi, -1")
    items.append(Item(q.ins))
    return items

def wf_flag(p):
    lw = L()
    p.e("s_cmp_lg_u32 %s, 3" % sW); p.e("s_cbranch_scc1 %s" % lw)
    p.maybe = "w3"
    p.e("s_lshl_b32 %s, %s, 11" % (sT[0], sM)); p.e("s_lshl_b32 %s, %s, 7" % (sT[1], sC))
    p.e("s_add_u32 %s, %s, %s" % (sT[0], sT[0], sT[1])); p.e("s_add_u32 %s, %s, %d" % (sT[0], sT[0], OFF_WF2))
    flag_store(p, sT[0], sEg, True)
    p.maybe = False
    p.e("%s:" % lw)

def wf_poll(p):
    lw = L()
    p.e("s_cmp_lg_u32 %s, 3" % sW); p.e("s_cbranch_scc1 %s" % lw)
    p.maybe = "w3"
    p.e("v_mul_u32_u24 v30, 7, %s" % vG); p.e("v_add_u32 v30, %s, v30" % sCB); p.e("v_mov_b32 v31, %s" % sCB)
    p.e("v_cmp_gt_u32 vcc, 16, v30"); p.e("v_cndmask_b32 v30, v31, v30, vcc")
    p.e("v_lshlrev_b32 v30, 11, v30"); p.e("v_lshl_add_u32 v31, %s, 7, v30" % vL15)
    p.e("s_mov_b32 %s, %d" % (sT[0], OFF_WF2))
    poll(p, sT[0], sEg, "v31")
    p.maybe = False
    p.e("%s:" % lw)

def halo_dma0(bg):
    p = Prog(); n0 = 0
    p.e("s_lshl_b32 %s, %s, 7" % (sD0, sC))
    p.e("s_sub_u32 %s, %s, 16" % (sD1, sD0)); p.e("s_mul_i32 %s, %s, 896" % (sD1, sD1))
    halo_s0(p, sD2); p.e("s_lshl_b32 %s, %s, 6" % (sA1, sD2)); p.e("s_add_u32 %s, %s, %s" % (sD1, sD1, sA1))
    p.e("s_cmp_eq_u32 %s, 0" % sC); p.e("s_cselect_b32 %s, 0x40000000, %s" % (sD1, sD1))
    p.e("s_lshl_b32 %s, %s, 10" % (sD2, sD2))
    p.e("v_mul_u32_u24 v123, 896, %s" % vL15); p.e("v_lshl_add_u32 v123, %s, 4, v123" % vG)
    for u in range(4):
        p.e("s_add_u32 m0, %s, %d" % (sD2, L_HXP[0] + u * 1024 - u * 64))
        p.e("buffer_load_dwordx4 v123, %s, %s offen offset:%d lds" % (sX, sD1, u * 64))
    p.e("s_lshl_b32 %s, %s, 6" % (sD1, sTH)); p.e("s_add_u32 %s, %s, %s" % (sD1, sD1, sD0))
    p.e("s_lshl_b32 %s, %s, 4" % (sD2, sW)); p.e("s_add_u32 %s, %s, %s" % (sD1, sD1, sD2))
    p.e("s_mul_i32 %s, %s, 896" % (sD1, sD1)); p.e("s_lshl_b32 %s, %s, 7" % (sD2, sCB)); p.e("s_add_u32 %s, %s, %s" % (sD1, sD1, sD2))
    p.e("s_lshl_b32 %s, %s, 11" % (sA1, sW))
    for rb in range(2):
        if rb: p.e("s_add_u32 %s, %s, 7168" % (sD1, sD1))
        p.e("s_add_u32 m0, %s, %d" % (sA1, L_RES + rb * 1024))
        p.e("buffer_load_dwordx4 v25, %s, %s offen lds" % (sX, sD1))
    cur = Item()
    for i in p.ins:
        cur.append(i)
        if i.tok: bg.append(cur); cur = Item()
    return [i.tok for i in p.ins if i.tok]

def halo_finish0(p, hd):
    HQ = 80
    halo_s0(p, sT[0]); p.e("s_lshl_b32 %s, %s, 10" % (sT[0], sT[0])); p.e("s_add_u32 %s, %s, %d" % (sT[0], sT[0], L_HXP[0]))
    p.e("v_add_u32 v26, %s, %s" % (sT[0], vL0))
    p.e("v_lshrrev_b32 v27, 1, %s" % vG)
    p.e("v_and_b32 v28, 7, %s" % vLane); p.e("v_xor_b32 v27, v27, v28")
    p.e("v_lshlrev_b32 v27, 4, v27")
    p.e("v_lshl_add_u32 v27, %s, 7, v27" % vL15)
    p.e("v_and_b32 v28, 1, %s" % vG)
    p.e("v_lshl_add_u32 v27, v28, 3, v27")
    p.e("s_lshl_b32 %s, %s, 11" % (sT[3], sW)); p.e("s_add_u32 %s, %s, %d" % (sT[3], sT[3], L_RES))
    p.e("v_add_u32 v27, %s, v27" % sT[3])
    for t in range(1, 4): p.e("v_xor_b32 v%d, %d, v27" % (27 + t, 32 * t))
    p.e("v_lshlrev_b32 %s, 11, %s" % (vStat, vG))
    p.e("v_lshl_add_u32 %s, %s, 3, %s" % (vStat, vL15, vStat))
    p.wait(hd)
    rd = [p.e("ds_read_b128 %s, v26 offset:%d" % (V(HQ + 4 * u, 4), u * 1024)) for u in range(4)]
    rd += [p.e("ds_read_b64 %s, v%d" % (V(RES + 2 * t, 2), 27 + t)) for t in range(4)]
    p.e("s_cmp_eq_u32 %s, 3" % sW); p.e("s_cselect_b64 vcc, -1, 0")
    p.wait(rd)
    for i in range(8): p.e("v_cndmask_b32_e64 v%d, v%d, 0, vcc" % (HQ + i, HQ + i))
    for i in range(16):
        p.e("v_dot2_f32_bf16 v100, v%d, v%d, %s" % (HQ + i, vOnes, "0" if i == 0 else "v100"))
        p.e("v_dot2_f32_bf16 v101, v%d, v%d, %s" % (HQ + i, HQ + i, "0" if i == 0 else "v101"))
    xgroup_reduce(p, ["v100", "v101"], "v_add_f32", ["v106", "v107"])
    p.e("s_lshl_b32 %s, %s, 7" % (sT[0], sW)); p.e("s_add_u32 %s, %s, %d" % (sT[0], sT[0], L_HSP))
    p.e("v_lshl_add_u32 v26, %s, 3, %s" % (vL15, sT[0]))
    t = p.e("ds_write_b64 v26, v[100:101]")
    return t

def sT896(p):
    p.e("s_movk_i32 %s, 896" % sT[2]); return sT[2]
def halo_s0(p, dst):
    p.e("s_lshl_b32 %s, %s, 2" % (dst, sW))
    p.e("s_min_u32 %s, %s, 10" % (dst, dst))

def pretouch_o(p, pr):
    if not OPT["pretouch"]: return
    p.e("v_and_b32 v26, 7, %s" % vLane); p.e("v_lshlrev_b32 v26, 7, v26")
    p.e("v_bfe_u32 v27, %s, 3, 1" % vLane); p.e("v_lshl_add_u32 v26, v27, 14, v26")
    p.e("s_lshl_b32 %s, %s, 15" % (sT[0], sW)); p.e("s_lshl_b32 %s, %s, 10" % (sT[1], sM))
    p.e("s_add_u32 %s, %s, %s" % (sT[0], sT[0], sT[1])); p.e("s_add_u32 %s, %s, %s" % (sT[0], sT[0], sCl17))
    p.e("s_add_u32 %s, %s, %d" % (sT[0], sT[0], OFF_O[pr]))
    p.e("s_mov_b64 exec, 0xffff")
    p.e("buffer_load_dword %s, v26, %s, %s offen sc1" % (vJunk, sWS, sT[0]))
    p.e("s_mov_b64 exec, -1")

def xtile_base(p, dst, off):
    p.e("s_lshl_b32 %s, %s, 2" % (dst, sTH)); p.e("s_add_u32 %s, %s, %s" % (dst, dst, sW))
    p.e("s_mul_i32 %s, %s, 14336" % (dst, dst))
    p.e("s_lshl_b32 %s, %s, 11" % (sT[5], sCB)); p.e("s_add_u32 %s, %s, %s" % (dst, dst, sT[5]))
    p.e("s_add_u32 %s, %s, %s" % (dst, dst, sCl17)); p.e("s_add_u32 %s, %s, %d" % (dst, dst, off))
def xstat_base(p, dst, off):
    p.e("s_lshl_b32 %s, %s, 2" % (dst, sTH)); p.e("s_add_u32 %s, %s, %s" % (dst, dst, sW))
    p.e("s_lshl_b32 %s, %s, 7" % (dst, dst))
    p.e("s_lshl_b32 %s, %s, 10" % (sT[5], sCB)); p.e("s_add_u32 %s, %s, %s" % (dst, dst, sT[5]))
    p.e("s_add_u32 %s, %s, %s" % (dst, dst, sCl17)); p.e("s_add_u32 %s, %s, %d" % (dst, dst, off + XST))

def pretouch_x(p, off):
    if not OPT["pretouch"]: return
    xtile_base(p, sT[0], off); xstat_base(p, sT[1], off)
    p.e("v_lshlrev_b32 v26, 7, %s" % vLane)
    p.e("s_mov_b64 exec, 0xffff")
    p.e("buffer_load_dword %s, v26, %s, %s offen sc1" % (vJunk, sWS, sT[0]))
    p.e("s_mov_b64 exec, 1")
    p.e("buffer_load_dword %s, v26, %s, %s offen sc1" % (vJunk, sWS, sT[1]))
    p.e("s_mov_b64 exec, -1")

def pretouch_h(p, pr):
    if not OPT["pretouch"]: return
    p.e("v_and_b32 v26, 31, %s" % vLane); p.e("v_min_u32 v26, 27, v26"); p.e("v_lshlrev_b32 v26, 7, v26")
    p.e("v_lshrrev_b32 v27, 5, %s" % vLane)
    p.e("s_mov_b32 %s, 57344" % sT[1])
    p.e("v_mad_u32_u24 v26, v27, %s, v26" % sT[1])
    h_base(p, sT[0], pr)
    p.e("buffer_load_dword %s, v26, %s, %s offen sc1" % (vJunk, sWS, sT[0]))
def h_base(p, dst, pr):
    p.e("s_mul_i32 %s, %s, 114688" % (dst, sW)); p.e("s_mul_i32 %s, %s, 3584" % (sT[5], sM))
    p.e("s_add_u32 %s, %s, %s" % (dst, dst, sT[5])); p.e("s_add_u32 %s, %s, %s" % (dst, dst, sCl19))
    p.e("s_add_u32 %s, %s, %d" % (dst, dst, OFF_H[pr]))

def pretouch_lin(p):
    p.e("s_cmp_eq_u32 %s, 11" % sM); p.e("s_cselect_b32 %s, 7, %s" % (sP0, sM))
    p.e("s_lshl2_add_u32 %s, %s, %s" % (sP1, sP0, sW)); p.e("s_and_b32 %s, %s, 15" % (sP2, sP1)); p.e("s_lshl_b32 %s, %s, 13" % (sP2, sP2))
    p.e("s_lshr_b32 %s, %s, 4" % (sP1, sP1)); p.e("s_mul_i32 %s, %s, %d" % (sP1, sP1, OFF_X1[0] - OFF_O[0]))
    p.e("s_add_u32 %s, %s, %s" % (sP1, sP1, sP2)); p.e("s_add_u32 %s, %s, %s" % (sP1, sP1, sCl17)); p.e("s_add_u32 %s, %s, %d" % (sP1, sP1, OFF_O[0]))
    p.e("s_cmp_eq_u32 %s, 7" % sM); p.e("s_cselect_b32 %s, 9, %s" % (sP0, sP0))
    p.e("s_cmp_ge_u32 %s, 8" % sP0); p.e("s_cselect_b32 %s, 0x40000000, %s" % (sP1, sP1))
    p.e("v_lshlrev_b32 v30, 7, %s" % vLane)
    p.e("buffer_load_dword %s, v30, %s, %s offen sc1" % (vJunk, sWS, sP1))

def code_touch(p):
    lb = L("Lc")
    p.e("s_getpc_b64 s[92:93]")
    p.e("%s:" % lb)
    p.e("s_sub_u32 s92, s92, %s-Lpc" % lb); p.e("s_subb_u32 s93, s93, 0")
    p.e("s_and_b32 %s, %s, 1" % (sP0, sC)); p.e("s_lshl_b32 %s, %s, 4" % (sP0, sP0)); p.e("s_add_u32 %s, %s, %s" % (sP0, sP0, sM))
    p.e("s_mul_i32 %s, %s, CODE_NL" % (sP0, sP0))
    p.e("v_min_u32 v30, CODE_NL-1, %s" % vLane); p.e("v_add_u32 v30, %s, v30" % sP0); p.e("v_lshlrev_b32 v30, 7, v30")
    p.e("v_min_u32 v30, Lcode_end-Lpc-4, v30")
    p.e("global_load_dword %s, v30, s[92:93]" % vJunk)

def pretouch_flags(p):
    if not OPT["pretouch"]: return
    p.e("v_lshlrev_b32 v26, 15, %s" % vLane)
    p.e("s_lshl_b32 %s, %s, 11" % (sT[0], sC)); p.e("s_lshl_b32 %s, %s, 7" % (sT[1], sM))
    p.e("s_add_u32 %s, %s, %s" % (sT[0], sT[0], sT[1])); p.e("s_add_u32 %s, %s, %d" % (sT[0], sT[0], OFF_FLAG))
    p.e("s_mov_b64 exec, 0x7f")
    p.e("buffer_load_dword %s, v26, %s, %s offen sc1" % (vJunk, sWS, sT[0]))
    p.e("s_mov_b64 exec, -1")

exec(open(__file__.replace("gen.py", "phases.py")).read())

def build():
    p = Prog()
    st = {}
    st['wq'], st['dots1'], st['role'] = startup(p)
    seq = [("p1", 0), ("p2", 0), ("p3", 0), ("p4", 0), ("p1", 1), ("p2", 1), ("p3", 1), ("p4", 1)]
    for n, (ph, pr) in enumerate(seq):
        globals()[ph](p, pr, st)
        if n + 1 >= OPT["stop"]: break
    le, l2 = L(), L()
    p.e("Lfin:")
    if OPT["stamps"] or OPT["stop"] < 8: p.waitall()
    stamp(p, "end"); stamp(p, "R1")
    if OPT["stamps"]:
        p.e("v_lshlrev_b32 v30, 2, %s" % vLane)
        p.e("buffer_store_dword v0, v30, %s, %s offen" % (sWS, sStN))
        p.e("buffer_store_dword v24, v30, %s, %s offen offset:256" % (sWS, sStN))
    if OPT["stop"] < 8:
        p.maybe = "end"; epoch_update(p); p.maybe = False
    p.e("Lend:")
    p.e("s_endpgm")
    p.add(TAILCODE)
    p.e("Lcode_end:")
    return p

def main():
    p = build()
    ins, nn = finalize(p)
    if OPT.get('align', 1):
        import align
        print('align (promoted, still misaligned):', align.align(ins, '.set CODE_NL, 14'))
    n_i = sum(1 for i in ins if i.kind not in ("label", "dir"))
    est = n_i * 7
    hdr = open("cdna_kernels/%s.s.ref" % NAME).read().split("; Override launch")[0]
    out = [hdr.rstrip(), "; Generated by a hand-written python generator (persistent fused kernel).",
           "; @launch grid=(256,1,1) block=(256,1,1) lds=%d" % LDS_BYTES,
           '.amdgcn_target "amdgcn-amd-amdhsa--gfx950"', ".text", ".globl %s_kernel" % NAME, ".p2align 8",
           ".type %s_kernel,@function" % NAME, ".set CODE_NL, %d" % min(64, (n_i * 8 // 128) // 32 + 1), "%s_kernel:" % NAME]
    out += [i.text for i in ins]
    out += ['.section .rodata,"a"', ".p2align 6", ".amdhsa_kernel %s_kernel" % NAME,
            "  .amdhsa_next_free_vgpr 512", "  .amdhsa_next_free_sgpr 102", "  .amdhsa_accum_offset 256",
            "  .amdhsa_group_segment_fixed_size 0", "  .amdhsa_kernarg_size 80", "  .amdhsa_user_sgpr_count 2",
            "  .amdhsa_user_sgpr_kernarg_segment_ptr 1", "  .amdhsa_system_sgpr_workgroup_id_x 1",
            "  .amdhsa_float_denorm_mode_32 3", ".end_amdhsa_kernel", ""]
    open(sys.argv[1], "w").write("\n".join(out))
    open(sys.argv[1] + ".stamps", "w").write("\n".join(STAMPS))
    print("instructions: %d, hazard nops: %d forced bg: %d" % (n_i, nn, FORCED[0]))
main()
```

```python
import sys, math, struct
from asmlib import *

NAME = "interleave_layers__sliding_local_dilated__glu_gated_swiglu__prompt"
OPT = dict(stop=99, stamps=0, forceslow=0, pretouch=1, p1_gap1=72, at_n1=3, post4=3, p1_early1=6, p3_gap1=110, p3_gap0=64, p1_early0=14, at_n0=4, p4_gap=100, g1_bgs0=4, g1_bgs1=24, p3_xa=14, wfp=1, p1_gap0=70, wfl=9, npoll=3, pollgap=7, ctouch=23, hlast0=2, hlast1=2, p3_npk0=2, spread=0, pt=7, hmod0=4, hmod1=4, outmod=1, mid_split=60, hf0=5, hf1=8, p3_x0=5, p4_x0=8, p2_x0=8, p1_x0=4)
for a in sys.argv[2:]:
    k_, v_ = a.split("="); OPT[k_] = int(v_, 0)

def f2u(x): return struct.unpack("<I", struct.pack("<f", x))[0]

OFF_EPOCH = 0; OFF_EG = 4096; OFF_HELLO = 0x2000; OFF_FLAG = 0x10000; OFF_HFLAG = 0x48000
OFF_WF1 = 0x50000; OFF_WF2 = 0x58000; OFF_STAMP = 0x60000
OFF_PWQ = 0x100000; OFF_PWO = 0x250000; OFF_PW13 = 0x2C0000; OFF_PW2 = 0x5D0000
OFF_CQ = 0x760000; OFF_C13 = 0x780000
ALIAS = OPT.get('alias', 1)
OFF_O = [0x800000, 0xC00000 if ALIAS else 0xA00000]; OFF_X1 = [0xC00000, 0x800000 if ALIAS else 0xE00000]; OFF_X2 = 0x800000 if ALIAS else 0x1000000
OFF_HALO = 0x1200000; OFF_H = [0x1400000, 0x1400000 if ALIAS else 0x1C00000]; WS_USED = 0x2400000
XST = 114688
HST = 14336
L_PWQ = 0; L_PWO = 86016; L_X = 151552; L_TAB = 159744
L_CQ = L_TAB; L_C13 = L_TAB + 512; L_MEAN = L_TAB + 1536; L_RSTD = L_TAB + 2176; L_HSP = L_TAB + 2816
L_TP = [[28672, 57344, 0, 86016, 114688, 28672, 57344], [0, 28672, 57344, 86016, 114688, 0, 28672]]
L_DUM = [L_TAB + 2048, L_TAB + 2048]; L_HP = 0; L_RED = 110592
L_ROLE = 49152; L_RES = L_X; OFFL = OPT.get('offload', 0); L_R4 = 100352 if OFFL else L_ROLE + 16384; L_R1 = 81920 if OFFL else L_ROLE + 24576; L_R1B = 108544 if OFFL else L_R1 + 4096; L_HXP = [L_PWO, L_PWO + 49152]
def L_WQ(s): return 114688 + s * 6144 if s < 6 else (s - 6) * 6144
LDS_BYTES = 163840
sWS = "s[24:27]"; sX = "s[28:31]"; sOUT = "s[32:35]"; sRAW = "s[36:39]"; sRAW2 = "s[40:43]"
sC, sM, sW, sCB, sTH, sE, sEn, sEg, sFast, sIdle = ["s%d" % i for i in range(44, 54)]
sT = ["s%d" % i for i in range(54, 60)]
sCl17, sCl19, sBud, sXcc = "s60", "s61", "s62", "s63"
M_OWN = ["s[%d:%d]" % (64 + 2 * r, 65 + 2 * r) for r in range(4)]
M_PRV = ["s[%d:%d]" % (72 + 2 * r, 73 + 2 * r) for r in range(4)]
M_PR0 = ["s[%d:%d]" % (80 + 2 * r, 81 + 2 * r) for r in range(4)]
sPWQ, sPWO, sPW13, sPW2 = "s88", "s89", "s90", "s91"
sD0, sD1, sD2 = "s92", "s93", "s94"
sW7k, sW4k, sQs, sPWQ7, sQm, sKey, sPW137, sBG, sB2 = ["s%d" % i for i in range(4, 13)]
sWQr, sW3r, sW1r, sW2r, sWOr = "s[36:39]", "s[40:43]", "s[88:91]", "s[12:15]", "s[16:19]"
sRB = "s3"; sM3 = "s[20:21]"; sPoll = sFast; sF0, sF1 = "s22", "s23"
sN = ["s%d" % i for i in range(36, 44)]
sA0, sA1 = "s95", "s96"
sStamp = "s[98:99]"; sStN = "s97"
vLane, vL0, vL64, vL128, vNinf, vL15, vG = "v1", "v2", "v3", "v4", "v5", "v6", "v7"
RES = 8
vPoll, vPo, vTag, vWo = "v16", "v17", "v18", "v19"
vOnes = 20
vJunk = "v16"
vStat = "v25"
vT = ["v%d" % i for i in range(26, 32)]

def V(n, cnt=1): return "v%d" % n if cnt == 1 else "v[%d:%d]" % (n, n + cnt - 1)
def A(n, cnt=1): return "a%d" % n if cnt == 1 else "a[%d:%d]" % (n, n + cnt - 1)
def lds(addr):
    b = addr >> 16
    return (vL0, vL64, vL128)[b], addr & 0xFFFF
_lab = [0]
def L(p="L"):
    _lab[0] += 1; return "%s%d" % (p, _lab[0])

STAMPS = []
def stamp(p, name):
    if not OPT["stamps"]: return
    idx = len(STAMPS); STAMPS.append(name); assert idx < 128
    p.e("%s %s" % ("s_memrealtime" if name.startswith("R") else "s_memtime", sStamp))
    p.e("s_waitcnt lgkmcnt(0)")
    p.e("v_writelane_b32 v%d, s98, %d" % (0 if idx < 64 else 24, idx % 64))

def stamp3(p, name):
    if OPT['stamps'] >= 3: stamp(p, name)

def stamp2(p, name):
    if OPT['stamps'] >= 2: stamp(p, name)

def dma_linear(p, sbase, src_const, lds_addr, nfr, mods=""):
    per = nfr // 4; assert per * 4 == nfr
    toks = []
    p.e("s_mul_i32 %s, %s, %d" % (sD0, sW, per * 1024))
    p.e("s_add_u32 %s, %s, %s" % (sD1, sD0, sbase))
    for g0 in range(0, per, 4):
        p.e("s_add_u32 m0, %s, %d" % (sD0, lds_addr + g0 * 1024))
        p.e("s_add_u32 %s, %s, %d" % (sD2, sD1, src_const + g0 * 1024))
        for u in range(min(4, per - g0)):
            toks.append(p.e("buffer_load_dwordx4 %s, %s, %s offen offset:%d %s lds" % (vL0, sWS, sD2, u * 1024, mods)))
    return toks

def poll(p, soff, stag, voff, out=None, mid=None):
    lp, ld = L("Lp"), L("Ld")
    old = p.maybe; p.maybe = old or "poll"
    if mid:
        p.e("buffer_load_dword %s, %s, %s, %s offen sc1" % (vPoll, voff, sWS, soff))
        mid(p)
        p.e("s_waitcnt vmcnt(0)")
        p.e("v_cmp_ne_u32 vcc, %s, %s" % (stag, vPoll))
        p.e("s_cbranch_vccz %s" % (out or ld))
    NPI = OPT.get("npoll", 1) if out else 1
    if NPI > 1:
        regs = [vPoll, "v30", "v31"][:NPI]
        for k, r in enumerate(regs):
            p.e("buffer_load_dword %s, %s, %s, %s offen sc1" % (r, voff, sWS, soff))
            if k < NPI - 1: p.e("s_nop %d" % OPT.get("pollgap", 15))
        p.e("%s:" % lp)
        for r in regs:
            p.e("s_waitcnt vmcnt(%d)" % (NPI - 1))
            p.e("v_cmp_ne_u32 vcc, %s, %s" % (stag, r))
            p.e("s_cbranch_vccz %s" % out)
            p.e("buffer_load_dword %s, %s, %s, %s offen sc1" % (r, voff, sWS, soff))
    else:
        p.e("%s:" % lp)
        p.e("buffer_load_dword %s, %s, %s, %s offen sc1" % (vPoll, voff, sWS, soff))
        p.e("s_waitcnt vmcnt(0)")
        p.e("v_cmp_ne_u32 vcc, %s, %s" % (stag, vPoll))
        p.e("s_cbranch_vccz %s" % (out or ld))
    p.e("s_sub_u32 %s, %s, 1" % (sBud, sBud))
    p.e("s_cbranch_scc0 %s" % lp)
    p.e("s_mov_b32 %s, 0" % sBud)
    p.e("%s:" % ld)
    p.maybe = old

def flag_store(p, soff, stag, sc1):
    p.e("v_mov_b32 %s, %s" % (vTag, stag))
    p.e("s_mov_b64 exec, 1")
    p.e("buffer_store_dword %s, off, %s, %s %s" % (vTag, sWS, soff, "sc1" if sc1 else ""))
    p.e("s_mov_b64 exec, -1")

def xgroup_reduce(p, regs, op, tmp):
    for perm in ("v_permlane16_swap_b32", "v_permlane32_swap_b32"):
        for r, t in zip(regs, tmp): p.e("v_mov_b32 %s, %s" % (t, r))
        for r, t in zip(regs, tmp): p.e("%s %s, %s" % (perm, r, t))
        for r, t in zip(regs, tmp): p.e("%s %s, %s, %s" % (op, r, r, t))

def finish_stats(p, s1, s2, nmean, rstd, tmp):
    p.e("v_mul_f32 %s, 0x%x, %s" % (nmean, f2u(-1.0 / 448), s1))
    p.e("v_mul_f32 %s, %s, %s" % (tmp, nmean, nmean))
    p.e("v_fma_f32 %s, %s, %s, -%s" % (tmp, s2, sInv448, tmp))
    p.e("v_max_f32 %s, 0, %s" % (tmp, tmp))
    p.e("v_add_f32 %s, 0x%x, %s" % (tmp, f2u(1e-5), tmp))
    p.e("v_rsq_f32 %s, %s" % (rstd, tmp))
sInv448 = "s100"; sH = "s101"; sSlowOff = "s63"
HEADMAP = [0, 7, 14, 5, 12, 3, 10, 2, 4, 6, 9, 1, 8, 15, 11, 13] if OPT.get("hmap", 1) else list(range(16))

def startup(p):
    p.e("s_cmp_ge_u32 s2, 256")
    p.e("s_cbranch_scc1 Lend")
    if OPT["stamps"]:
        p.e("s_memrealtime s[64:65]"); p.e("s_memtime s[66:67]")
    k1 = p.e("s_load_dwordx16 s[4:19], s[0:1], 0")
    k2 = p.e("s_load_dwordx4 s[20:23], s[0:1], 64")
    p.e("s_getpc_b64 s[36:37]")
    p.e("Lpc:")
    p.e("s_lshr_b32 %s, s2, 3" % sT[0])
    p.e("v_and_b32 %s, 63, v0" % vLane)
    p.e("v_lshrrev_b32 v26, 6, v0")
    p.e("s_mul_i32 %s, %s, CODE_NL" % (sT[1], sT[0]))
    p.e("v_min_u32 v27, CODE_NL-1, %s" % vLane)
    p.e("v_add_u32 v27, %s, v27" % sT[1])
    p.e("v_lshlrev_b32 v27, 7, v27")
    p.e("v_min_u32 v27, Lcode_end-Lpc-4, v27")
    p.e("v_readfirstlane_b32 %s, v26" % sW)
    p.e("global_load_dword %s, v27, s[36:37]" % vJunk)
    p.e("s_and_b32 %s, s2, 7" % sT[1])
    p.e("s_lshr_b32 %s, %s, 4" % (sC, sT[0]))
    p.e("s_lshl1_add_u32 %s, %s, %s" % (sC, sT[1], sC))
    p.e("s_and_b32 %s, %s, 15" % (sM, sT[0]))
    hk = sum(h << (4 * i) for i, h in enumerate(HEADMAP))
    p.e("s_mov_b32 s70, 0x%x" % (hk & 0xFFFFFFFF)); p.e("s_mov_b32 s71, 0x%x" % (hk >> 32))
    p.e("s_lshl_b32 %s, %s, 2" % (sT[1], sM)); p.e("s_lshr_b64 s[70:71], s[70:71], %s" % sT[1]); p.e("s_and_b32 %s, s70, 15" % sH)
    p.e("s_cmp_ge_u32 %s, 7" % sM)
    p.e("s_cselect_b32 %s, 1, 0" % sTH)
    p.e("s_cselect_b32 %s, 7, 0" % sT[1])
    p.e("s_sub_u32 %s, %s, %s" % (sCB, sM, sT[1]))
    p.e("s_cmp_ge_u32 %s, 14" % sM)
    p.e("s_cselect_b32 %s, 1, 0" % sIdle)
    p.e("s_cselect_b32 %s, 7, 0" % sT[1])
    p.e("s_sub_u32 %s, %s, %s" % (sCB, sCB, sT[1]))
    p.e("v_lshlrev_b32 %s, 4, %s" % (vL0, vLane))
    p.e("v_and_b32 %s, 15, %s" % (vL15, vLane))
    p.e("v_lshrrev_b32 %s, 4, %s" % (vG, vLane))
    p.e("v_lshrrev_b32 v28, 3, %s" % vLane)
    p.e("v_and_b32 v29, 7, %s" % vLane)
    p.e("v_lshlrev_b32 v29, 4, v29")
    p.wait(k1, k2)
    if OPT["stamps"]:
        p.e("s_memtime s[68:69]"); p.e("s_waitcnt lgkmcnt(0)")
    if OPT.get("wsbase", 0):
        p.e("s_add_u32 s22, s22, 0x%x" % (OPT["wsbase"] << 20)); p.e("s_addc_u32 s23, s23, 0")
    for srd, lo, size in ((24, 22, WS_USED), (28, 4, 1835008), (32, 18, 1835008)):
        p.e("s_mov_b32 s%d, s%d" % (srd, lo)); p.e("s_mov_b32 s%d, s%d" % (srd + 1, lo + 1))
        p.e("s_mov_b32 s%d, 0x%x" % (srd + 2, size)); p.e("s_mov_b32 s%d, 0x20000" % (srd + 3))
    def srd(n, lo, size):
        p.e("s_mov_b32 s%d, s%d" % (n, lo)); p.e("s_mov_b32 s%d, s%d" % (n + 1, lo + 1))
        p.e("s_mov_b32 s%d, %d" % (n + 2, size)); p.e("s_mov_b32 s%d, 0x20000" % (n + 3))
    srd(36, 6, 1204224)
    if OPT.get("xtouch", 1):
        p.e("s_lshl2_add_u32 %s, %s, %s" % (sT[0], sM, sW)); p.e("s_lshl_b32 %s, %s, 11" % (sT[0], sT[0]))
        p.e("s_mul_i32 %s, %s, 114688" % (sT[1], sC)); p.e("s_add_u32 %s, %s, %s" % (sT[0], sT[0], sT[1]))
        p.e("s_sub_u32 %s, %s, 14336" % (sT[1], sT[0])); p.e("s_cselect_b32 %s, %s, %s" % (sT[0], sT[0], sT[1]))
        p.e("v_lshlrev_b32 v30, 7, %s" % vL15)
        p.e("s_mov_b64 exec, 0xffff")
        p.e("buffer_load_dword %s, v30, %s, %s offen" % (vJunk, sX, sT[0]))
        p.e("s_mov_b64 exec, -1")
    p.e("s_lshl_b32 %s, %s, 7" % (sT[0], sC))
    p.e("s_lshl_b32 %s, %s, 5" % (sT[1], sW))
    p.e("s_add_u32 %s, %s, %s" % (sT[1], sT[1], sT[0]))
    p.e("s_mul_i32 %s, %s, 896" % (sA0, sT[1]))
    p.e("s_mul_i32 %s, %s, 28672" % (sA1, sW))
    p.e("v_and_b32 v25, 7, %s" % vLane)
    p.e("v_xor_b32 v25, v25, v28")
    p.e("v_lshlrev_b32 v25, 4, v25")
    p.e("s_movk_i32 %s, 896" % sT[2])
    p.e("v_mad_u32_u24 v25, v28, %s, v25" % sT[2])
    xd = []
    def xdma(i):
        rb, lc = i // 7, i % 7
        if lc == 0 and rb: p.e("s_add_u32 %s, %s, 7168" % (sA0, sA0))
        p.e("s_add_u32 m0, %s, %d" % (sA1, i * 1024 - lc * 128))
        xd.append(p.e("buffer_load_dwordx4 v25, %s, %s offen offset:%d lds" % (sX, sA0, lc * 128)))
    srd(40, 14, 1605632); srd(88, 12, 1605632); srd(12, 16, 1605632); srd(16, 8, 401408)
    def wtouch(lst, p=p):
        p.e("s_lshl2_add_u32 %s, s2, %s" % (sT[0], sW))
        p.e("v_lshlrev_b32 v30, 7, %s" % vLane)
        for sr, n in lst:
            p.e("s_mul_i32 %s, %s, %d" % (sT[1], sT[0], n * 128))
            p.e("s_mov_b64 exec, 0x%x" % ((1 << n) - 1))
            p.e("buffer_load_dword %s, v30, %s, %s offen" % (vJunk, sr, sT[1]))
        p.e("s_mov_b64 exec, -1")
    low = [(sW1r, 13), (sW3r, 13), (sWOr, 4), (sW2r, 13)]
    TM = OPT.get("tmode", 3)
    if TM in (1, 3): wtouch([(sWQr, 10)])
    if TM == 2: wtouch([(sWQr, 10)] + low)
    if OPT["stamps"]:
        p.e("s_lshl_b32 %s, s2, 2" % sStN); p.e("s_add_u32 %s, %s, %s" % (sStN, sStN, sW))
        p.e("s_lshl_b32 %s, %s, 9" % (sStN, sStN)); p.e("s_add_u32 %s, %s, %d" % (sStN, sStN, OFF_STAMP))
        for nm_, sr in (("entry", "s66"), ("R0", "s64"), ("S.karg", "s68")):
            idx = len(STAMPS); STAMPS.append(nm_)
            p.e("v_writelane_b32 v0, %s, %d" % (sr, idx))
    p.e("s_lshl_b32 %s, %s, 7" % (sT[0], sC))
    p.e("s_lshl_b32 %s, %s, 7" % (sT[1], sCB))
    p.e("s_add_u32 %s, %s, %d" % (sT[1], sT[1], OFF_EG))
    p.e("s_add_u32 %s, %s, 128" % (sT[2], sT[0]))
    e1 = p.e("s_load_dword %s, s[22:23], %s" % (sE, sT[0]))
    e2 = p.e("s_load_dword %s, s[22:23], %s" % (sEn, sT[2]))
    e3 = p.e("s_load_dword %s, s[22:23], %s" % (sEg, sT[1]))
    p.e("s_lshr_b32 %s, %s, 1" % (sT[0], sW)); p.e("s_mul_i32 %s, %s, 192" % (sT[1], sT[0]))
    p.e("s_mul_i32 %s, %s, 56" % (sT[2], sH)); p.e("s_movk_i32 %s, 2688" % sT[3]); p.e("s_movk_i32 %s, 896" % sT[4])
    for u in range(3):
        r = 244 + u
        p.e("v_add_u32 v26, %s, %s" % (sT[1], vLane))
        if u: p.e("v_add_u32 v26, %d, v26" % (64 * u))
        p.e("v_mul_u32_u24 v27, 5462, v26"); p.e("v_lshrrev_b32 v27, 16, v27")
        p.e("v_mul_u32_u24 v28, 12, v27"); p.e("v_sub_u32 v26, v26, v28")
        p.e("v_lshrrev_b32 v28, 2, v27"); p.e("v_lshrrev_b32 v29, 3, v27"); p.e("v_xor_b32 v28, v28, v29")
        p.e("v_and_b32 v28, 1, v28"); p.e("v_lshlrev_b32 v28, 1, v28"); p.e("v_xor_b32 v26, v26, v28")
        p.e("v_lshrrev_b32 v28, 2, v26"); p.e("v_and_b32 v26, 3, v26")
        p.e("v_lshl_add_u32 v26, v26, 4, %s" % sT[2])
        p.e("v_mad_u32_u24 v26, v28, %s, v26" % sT[4])
        p.e("v_mad_u32_u24 v%d, v27, %s, v26" % (r, sT[3]))
        if u: p.e("v_subrev_u32 v%d, %d, v%d" % (r, 1024 * u, r))
    p.e("s_and_b32 %s, %s, 1" % (sT[1], sW))
    p.e("s_mul_i32 %s, %s, 86016" % (sQs, sT[1]))
    p.e("s_mul_i32 %s, %s, 6144" % (sQm, sT[1])); p.e("s_mul_i32 %s, %s, 3072" % (sT[0], sT[0])); p.e("s_add_u32 %s, %s, %s" % (sQm, sQm, sT[0]))
    p.e("v_add_u32 %s, 0x10000, %s" % (vL64, vL0))
    p.e("v_add_u32 %s, 0x20000, %s" % (vL128, vL0))
    p.e("v_mov_b32 %s, 0xff800000" % vNinf)
    p.e("v_mov_b32 %s, 0" % vPo)
    for i in range(4): p.e("v_mov_b32 v%d, 0x3f803f80" % (vOnes + i))
    p.e("s_mov_b32 %s, 0x%x" % (sInv448, f2u(1.0 / 448)))
    p.e("s_lshl_b32 %s, %s, 17" % (sCl17, sC))
    p.e("s_lshl_b32 %s, %s, 19" % (sCl19, sC))
    p.e("s_mov_b32 %s, 60000" % sBud)
    p.e("s_mov_b32 s20, 0"); p.e("s_mov_b32 s21, 0xffff0000")
    for r in range(4):
        p.e("v_lshl_add_u32 v26, %s, 2, %d" % (vG, r))
        p.e("v_sub_u32 v27, %s, v26" % vL15)
        p.e("v_and_b32 v28, 1, v27")
        p.e("v_cmp_eq_u32 vcc, 0, v28")
        p.e("v_cmp_le_i32_e64 %s, 0, v27" % M_OWN[r])
        p.e("v_cmp_ge_i32_e64 %s, -2, v27" % M_PRV[r])
        p.e("s_and_b64 %s, %s, vcc" % (M_OWN[r], M_OWN[r]))
        p.e("s_and_b64 %s, %s, vcc" % (M_PRV[r], M_PRV[r]))
    p.e("s_or_b32 %s, %s, %s" % (sT[0], sC, sW))
    p.e("s_cmp_eq_u32 %s, 0" % sT[0])
    for r in range(4): p.e("s_cselect_b64 %s, 0, %s" % (M_PR0[r], M_PRV[r]))
    stamp(p, "S.const")
    p.wait(e1, e2, e3)
    for s in (sE, sEn, sEg):
        p.e("s_mul_i32 %s, %s, 0x9e3779b1" % (s, s)); p.e("s_add_u32 %s, %s, 0x7f4a7c15" % (s, s))
    lh = L()
    p.e("s_getreg_b32 %s, hwreg(HW_REG_XCC_ID)" % sXcc)
    p.e("s_and_b32 %s, %s, 15" % (sXcc, sXcc))
    p.e("s_andn2_b32 %s, %s, 15" % (sT[0], sE))
    p.e("s_or_b32 %s, %s, %s" % (sXcc, sXcc, sT[0]))
    p.e("s_mov_b32 %s, 2" % sFast)
    p.e("s_cmp_lg_u32 %s, 3" % sW); p.e("s_cbranch_scc1 %s" % lh)
    p.maybe = "h"
    p.e("s_lshl_b32 %s, %s, 11" % (sT[0], sC)); p.e("s_lshl_b32 %s, %s, 7" % (sT[1], sM))
    p.e("s_add_u32 %s, %s, %s" % (sT[0], sT[0], sT[1])); p.e("s_add_u32 %s, %s, %d" % (sT[0], sT[0], OFF_HELLO))
    flag_store(p, sT[0], sXcc, True)
    p.maybe = False
    p.e("%s:" % lh)
    p.e("v_and_b32 v80, 7, %s" % vLane)
    p.e("v_bfe_u32 v81, %s, 3, 1" % vLane)
    p.e("v_xor_b32 v82, %s, v80" % vG)
    p.e("v_lshlrev_b32 v82, 4, v82")
    p.e("v_lshl_add_u32 v82, v80, 7, v82")
    p.e("s_movk_i32 %s, 7168" % sT[2])
    p.e("v_mad_u32_u24 v82, v81, %s, v82" % sT[2])
    p.e("v_add_u32 v82, %s, v82" % sA1)
    p.e("v_xor_b32 v83, 64, v82")
    def dots(j):
        q = Prog()
        for i in range(56):
            reg = 128 + 56 * j + i
            q.e("v_dot2_f32_bf16 v%d, v%d, v%d, %s" % (96 + 2 * j, reg, vOnes, "0" if i == 0 else "v%d" % (96 + 2 * j)))
            q.e("v_dot2_f32_bf16 v%d, v%d, v%d, %s" % (97 + 2 * j, reg, reg, "0" if i == 0 else "v%d" % (97 + 2 * j)))
        return q.ins
    def xreads(j):
        return [p.e("ds_read_b128 %s, v%d offset:%d" % (V(128 + (j * 14 + s_) * 4, 4), 82 + (s_ & 1), j * 14336 + (s_ >> 1) * 1024)) for s_ in range(14)]
    bg = BGQ
    for i in range(28): xdma(i)
    wq = [rawq(p, 0)]
    stamp(p, "S.xiss")
    p.wait(xd[:14]); r0 = xreads(0)
    wq += [rawq_bg(bg, ch) for ch in range(1, OPT.get('nwa', 3))]
    if TM == 1:
        q = Prog(); wtouch(low, q); bg.append(Item(q.ins))
    if TM == 3:
        q = Prog(); wtouch([(sWOr, 4)], q); bg.append(Item(q.ins))
    bg.pt(p, 3)
    p.wait(r0)
    p.add(spr(dots(0), bg, OPT.get("tail_gap", 100)))
    while bg: bg.pt(p)
    p.wait(xd)
    stamp(p, "S.xin")
    xreads(1)
    p.e("v_lshrrev_b32 v28, 3, %s" % vLane)
    p.e("v_and_b32 v29, 7, %s" % vLane)
    p.e("v_lshrrev_b32 v26, 4, %s" % vLane); p.e("v_lshlrev_b32 v26, 1, v26"); p.e("v_xor_b32 v26, v26, v29")
    p.e("v_lshlrev_b32 v26, 4, v26"); p.e("s_movk_i32 %s, 896" % sT[2]); p.e("v_mad_u32_u24 %s, v28, %s, v26" % (vWo, sT[2]))
    p.e("v_lshlrev_b32 v29, 4, v29")
    p.e("v_mad_u32_u24 v127, v28, %s, v29" % sT[2])
    p.e("s_movk_i32 %s, 3584" % sT[2]); p.e("v_mad_u32_u24 v126, v28, %s, v29" % sT[2])
    p.e("s_mul_i32 %s, %s, 224" % (sRB, sM)); p.e("s_mul_i32 %s, %s, 114688" % (sT[1], sC)); p.e("s_add_u32 %s, %s, %s" % (sRB, sRB, sT[1]))
    p.e("s_add_u32 %s, %s, %s" % (sRB, sRB, sA1))
    p.e("s_lshl1_add_u32 s22, %s, %s" % (sC, sTH)); p.e("s_mul_i32 s22, s22, 57344")
    p.e("s_lshl_b32 %s, %s, 7" % (sT[1], sCB)); p.e("s_add_u32 s22, s22, %s" % sT[1])
    p.e("s_mul_i32 %s, %s, 7168" % (sT[1], sW)); p.e("s_add_u32 s22, s22, %s" % sT[1])
    p.e("s_cmp_lg_u32 %s, 0" % sIdle); p.e("s_cselect_b32 s22, 0x40000000, s22")
    p.e("s_cmp_ge_u32 %s, 14" % sC); p.e("s_cselect_b32 s22, 0x40000000, s22"); p.e("s_cselect_b32 %s, 0x40000000, %s" % (sRB, sRB))
    if OFFL:
        p.e("s_add_u32 s2, %s, %d" % (sRB, 7 * 224)); p.e("s_cmp_ge_u32 %s, 4" % sM); p.e("s_cselect_b32 s2, 0x40000000, s2")
        p.e("s_sub_u32 %s, %s, 7" % (sT[1], sM)); p.e("s_cmp_lt_u32 %s, 4" % sT[1]); p.e("s_cselect_b32 %s, 0x40000000, %s" % (sRB, sRB))
    p.e("s_lshl_b32 s23, %s, 10" % sW)
    p.e("s_mul_i32 s9, %s, 86016" % sC); p.e("s_mul_i32 %s, %s, 21504" % (sT[1], sW)); p.e("s_add_u32 s9, s9, %s" % sT[1])
    p.e("s_cmp_ge_u32 %s, 14" % sC); p.e("s_cselect_b32 s9, 0x40000000, s9")
    p.e("v_lshrrev_b32 v26, 2, %s" % vL15); p.e("v_and_b32 v27, 3, %s" % vLane); p.e("s_movk_i32 %s, 896" % sT[2])
    p.e("v_mul_u32_u24 v247, 2688, %s" % vG); p.e("v_lshl_add_u32 v247, v27, 4, v247"); p.e("v_mad_u32_u24 v247, v26, %s, v247" % sT[2])
    p.e("s_mul_i32 %s, %s, 56" % (sT[0], sH)); p.e("v_add_u32 v247, %s, v247" % sT[0])
    p.e("v_cmp_eq_u32 vcc, 3, v26"); p.e("v_bfrev_b32 v31, 1"); p.e("v_cndmask_b32 v247, v247, v31, vcc")
    p.waitall(vm=False)
    p.e("s_barrier")
    role = []
    for half in range(2):
        for mat, sr in enumerate((sW1r, sW3r)):
            q = Prog()
            q.e("s_add_u32 m0, s23, %d" % (L_ROLE + half * 8192 + mat * 4096 - half * 128))
            q.e("buffer_load_dwordx4 v126, %s, %s offen offset:%d nt lds" % (sr, sRB, half * 128))
            role.append(Item(q.ins))
            if OFFL:
                q = Prog()
                q.e("s_add_u32 m0, s23, %d" % (L_ROLE + 16384 + half * 8192 + mat * 4096 - half * 128))
                q.e("buffer_load_dwordx4 v126, %s, s2 offen offset:%d nt lds" % (sr, half * 128))
                role[-1].extend(q.ins)
    for u in range(2):
        q = Prog()
        q.e("s_add_u32 m0, s23, %d" % (L_R4 + u * 4096))
        if u: q.e("s_add_u32 s22, s22, 28672")
        q.e("buffer_load_dwordx4 v127, %s, s22 offen nt lds" % sW2r)
        role.append(Item(q.ins))
    for u in range(2):
        q = Prog()
        q.e("s_cmp_ge_u32 %s, 2" % sW); q.e("s_cselect_b32 %s, %d, 0" % (sBG, L_R1B - L_R1 - 4096)); q.e("s_lshl1_add_u32 %s, s23, %s" % (sBG, sBG))
        q.e("s_add_u32 m0, %s, %d" % (sBG, L_R1 + u * 1024))
        if u: q.e("s_add_u32 s9, s9, 10752")
        q.e("buffer_load_dwordx4 v247, %s, s9 offen lds" % sWQr)
        role.append(Item(q.ins))
    pp_ = p; p = Prog()
    p.e("s_mul_i32 %s, %s, 86016" % (sPWQ, sM)); p.e("s_add_u32 %s, %s, %d" % (sPWQ, sPWQ, OFF_PWQ))
    p.e("s_mul_i32 %s, %s, 200704" % (sPW13, sM)); p.e("s_add_u32 %s, %s, %d" % (sPW13, sPW13, OFF_PW13))
    p.e("s_mul_i32 %s, %s, 229376" % (sPW2, sCB)); p.e("s_mul_i32 %s, %s, 57344" % (sT[0], sW))
    p.e("s_add_u32 %s, %s, %s" % (sPW2, sPW2, sT[0])); p.e("s_add_u32 %s, %s, %d" % (sPW2, sPW2, OFF_PW2))
    p.e("s_mul_i32 %s, %s, 7168" % (sW7k, sW)); p.e("s_lshl_b32 %s, %s, 12" % (sW4k, sW))
    p.e("s_add_u32 %s, %s, %s" % (sPWQ7, sPWQ, sW7k)); p.e("s_add_u32 %s, %s, %s" % (sPW137, sPW13, sW7k))
    p.e("s_mul_i32 %s, %s, 25088" % (sPWO, sW)); p.e("s_lshl_b32 %s, %s, 7" % (sT[0], sCB)); p.e("s_add_u32 %s, %s, %s" % (sPWO, sPWO, sT[0]))
    p.e("s_cmp_lg_u32 %s, 0" % sIdle)
    p.e("s_cselect_b32 %s, 0x40000000, %s" % (sPWO, sPWO)); p.e("s_cselect_b32 %s, 0x40000000, %s" % (sPW2, sPW2))
    role.append(Item(p.ins)); p = pp_
    stamp(p, "S.role2")
    return wq, dots(1), role

def rawq_bg(bg, ch):
    q = Prog(); t = rawq(q, ch)
    bg.append(Item(q.ins[:3]))
    for k in (3, 4):
        it = Item([q.ins[k]]); it.cont = True; bg.append(it)
    return t

def rawq(p, ch):
    p.e("s_add_u32 m0, %s, %d" % (sQm, L_WQ(2 * ch)))
    p.e("s_add_u32 %s, %s, %d" % (sBG, sQs, ch * 172032))
    return [p.e("buffer_load_dwordx4 v%d, %s, %s offen offset:%d lds" % (244 + u, sWQr, sBG, u * 1024)) for u in range(3)]

def repack(p):
    sa, sb, sc_, sd, se, sf = "s40", "s41", "s42", "s43", "s22", "s23"
    p.e("v_lshrrev_b32 v26, 2, %s" % vL15)
    p.e("v_and_b32 v27, 3, %s" % vLane)
    p.e("v_lshlrev_b32 v27, 3, v27")
    p.e("v_lshrrev_b32 v30, 1, %s" % vG)
    p.e("v_and_b32 v29, 1, %s" % vG)
    p.e("v_lshl_add_u32 v28, v30, 2, v26")
    p.e("v_lshl_add_u32 v28, v28, 7, v27")
    p.e("v_lshl_add_u32 v28, v29, 12, v28")
    p.e("s_lshr_b32 %s, %s, 1" % (sT[0], sW)); p.e("s_and_b32 %s, %s, 1" % (sT[1], sW)); p.e("s_lshl_b32 %s, %s, 6" % (sT[1], sT[1]))
    p.e("s_lshl_b32 %s, %s, 13" % (sT[2], sT[0])); p.e("s_add_u32 %s, %s, %s" % (sT[2], sT[2], sT[1])); p.e("s_add_u32 %s, %s, %d" % (sT[2], sT[2], L_ROLE))
    p.e("v_add_u32 v28, %s, v28" % sT[2])
    for i in range(2):
        for pp in range(2):
            f = 32 + (i * 2 + pp) * 4
            p.e("ds_read_b64_tr_b16 %s, v28 offset:%d" % (A(f, 2), pp * 1024 + i * 32))
            p.e("ds_read_b64_tr_b16 %s, v28 offset:%d" % (A(f + 2, 2), pp * 1024 + i * 32 + 2048))
            if OFFL:
                p.e("ds_read_b64_tr_b16 %s, v28 offset:%d" % (A(f + 64, 2), 16384 + pp * 1024 + i * 32))
                p.e("ds_read_b64_tr_b16 %s, v28 offset:%d" % (A(f + 66, 2), 16384 + pp * 1024 + i * 32 + 2048))
    p.e("v_lshl_add_u32 v30, v30, 4, v26")
    p.e("v_lshl_add_u32 v30, v29, 2, v30")
    p.e("v_lshl_add_u32 v30, v30, 7, v27")
    p.e("s_lshl_b32 %s, %s, 12" % (sT[2], sT[0])); p.e("s_add_u32 %s, %s, %s" % (sT[2], sT[2], sT[1])); p.e("s_add_u32 %s, %s, %d" % (sT[2], sT[2], L_R4))
    p.e("v_add_u32 v30, %s, v30" % sT[2])
    for t in range(2):
        p.e("ds_read_b64_tr_b16 %s, v30 offset:%d" % (A(48 + 4 * t, 2), t * 32))
        p.e("ds_read_b64_tr_b16 %s, v30 offset:%d" % (A(50 + 4 * t, 2), t * 32 + 1024))
    p.e("v_lshl_add_u32 v31, %s, 3, v26" % vG); p.e("v_lshl_add_u32 v31, v31, 8, v27")
    p.e("s_lshl_b32 %s, %s, 6" % (sT[2], sW)); p.e("s_add_u32 %s, %s, %d" % (sT[2], sT[2], L_R1)); p.e("v_add_u32 v31, %s, v31" % sT[2])
    p.e("v_lshrrev_b32 v26, 1, %s" % vG); p.e("s_mov_b32 %s, %d" % (sT[2], L_R1B - L_R1 - 4096)); p.e("v_mad_u32_u24 v31, v26, %s, v31" % sT[2])
    for t in range(2):
        p.e("ds_read_b64_tr_b16 %s, v31 offset:%d" % (A(56 + 4 * t, 2), t * 32))
        p.e("ds_read_b64_tr_b16 %s, v31 offset:%d" % (A(58 + 4 * t, 2), t * 32 + 1024))
    if OPT.get("twopass", 0):
        p.e("s_lshl_b32 %s, %s, 12" % (se, sC)); p.e("s_lshl_b32 %s, %s, 11" % (sT[1], sW)); p.e("s_add_u32 %s, %s, %s" % (se, se, sT[1])); p.e("s_sub_u32 %s, %s, 2048" % (se, se))
        p.e("s_lshl_b32 %s, %s, 11" % (sT[1], sC)); p.e("s_add_u32 %s, %s, 57344" % (sT[1], sT[1]))
        p.e("s_cmp_eq_u32 %s, 0" % sW); p.e("s_cselect_b32 %s, %s, %s" % (se, sT[1], se))
    else:
        p.e("s_mul_i32 %s, %s, 6144" % (se, sC)); p.e("s_lshl_b32 %s, %s, 11" % (sT[1], sW)); p.e("s_add_u32 %s, %s, %s" % (se, se, sT[1]))
    p.e("s_add_u32 %s, %s, %s" % (se, se, sPWQ))
    p.e("s_mul_i32 %s, %s, 57344" % (sa, sW)); p.e("s_add_u32 %s, %s, %s" % (sa, sa, sPW13))
    p.e("s_lshl_b32 %s, %s, 11" % (sT[1], sC)); p.e("s_add_u32 %s, %s, %s" % (sa, sa, sT[1]))
    p.e("s_add_u32 %s, %s, 28672" % (sb, sa))
    p.e("s_mul_i32 %s, %s, 14" % (sc_, sM)); p.e("s_add_u32 %s, %s, %s" % (sc_, sc_, sC))
    p.e("s_mul_i32 %s, %s, 896" % (sc_, sc_))
    p.e("s_lshl_b32 %s, %s, 8" % (sT[1], sW))
    p.e("s_add_u32 %s, %s, %s" % (sc_, sc_, sT[1])); p.e("s_add_u32 %s, %s, %d" % (sc_, sc_, OFF_C13))
    p.e("s_add_u32 %s, %s, 128" % (sf, sc_))
    p.e("s_lshl1_add_u32 %s, %s, %s" % (sd, sC, sTH)); p.e("s_lshl_b32 %s, %s, 13" % (sd, sd))
    p.e("s_mul_i32 %s, %s, 229376" % (sT[1], sCB)); p.e("s_add_u32 %s, %s, %s" % (sd, sd, sT[1]))
    p.e("s_lshl_b32 %s, %s, 11" % (sT[1], sW)); p.e("s_add_u32 %s, %s, %s" % (sd, sd, sT[1])); p.e("s_add_u32 %s, %s, %d" % (sd, sd, OFF_PW2))
    p.e("s_cmp_ge_u32 %s, 14" % sC)
    for r_ in (sa, sb, sc_, sd, se, sf): p.e("s_cselect_b32 %s, 0x40000000, %s" % (r_, r_))
    p.e("s_cmp_eq_u32 %s, 3" % sW)
    for r_ in (sb, se, sf): p.e("s_cselect_b32 %s, 0x40000000, %s" % (r_, r_))
    p.e("s_cmp_ge_u32 %s, 14" % sM); p.e("s_cselect_b32 %s, 0x40000000, %s" % (sd, sd))
    if OFFL:
        p.e("s_cmp_lt_u32 %s, 4" % sM)
        p.e("s_mov_b32 s2, 0x40000000"); p.e("s_cselect_b32 s3, %d, s2" % (7 * 200704)); p.e("s_cselect_b32 s9, %d, s2" % (7 * 12544))
        p.e("s_sub_u32 %s, %s, 7" % (sT[1], sM)); p.e("s_cmp_lt_u32 %s, 4" % sT[1])
        for r_ in (sa, sb, sc_, sf): p.e("s_cselect_b32 %s, 0x40000000, %s" % (r_, r_))
    p.e("v_lshlrev_b32 v127, 2, %s" % vLane)
    p.waitall(vm=False)
    for i in range(2):
        p.e("v_mfma_f32_32x32x16_bf16 %s, %s, %s, 0" % (A(64 + 16 * i, 16), V(vOnes, 4), A(32 + 8 * i, 4)))
        p.e("v_mfma_f32_32x32x16_bf16 %s, %s, %s, %s" % (A(64 + 16 * i, 16), V(vOnes, 4), A(36 + 8 * i, 4), A(64 + 16 * i, 16)))
    for i in range(2 if OFFL else 0):
        p.e("v_mfma_f32_32x32x16_bf16 %s, %s, %s, 0" % (A(112 + 16 * i, 16), V(vOnes, 4), A(96 + 8 * i, 4)))
        p.e("v_mfma_f32_32x32x16_bf16 %s, %s, %s, %s" % (A(112 + 16 * i, 16), V(vOnes, 4), A(100 + 8 * i, 4), A(112 + 16 * i, 16)))
    items = []
    for r0, so in ((32, sa), (40, sb), (48, sd), (56, se)):
        for k in range(2):
            q = Prog(); q.e("buffer_store_dwordx4 %s, %s, %s, %s offen offset:%d sc1" % (A(r0 + 4 * k, 4), vL0, sWS, so, k * 1024)); items.append(Item(q.ins))
    for r0, so in (((96, sa), (104, sb)) if OFFL else ()):
        for k in range(2):
            q = Prog(); q.e("s_add_u32 %s, %s, s3" % (sP2, so))
            q.e("buffer_store_dwordx4 %s, %s, %s, %s offen offset:%d sc1" % (A(r0 + 4 * k, 4), vL0, sWS, sP2, k * 1024)); items[(r0 - 96) // 4 + k].extend(q.ins)
    q = Prog()
    q.e("s_mov_b32 exec_hi, 0")
    q.e("buffer_store_dword a64, v127, %s, %s offen sc1" % (sWS, sc_))
    q.e("buffer_store_dword a80, v127, %s, %s offen sc1" % (sWS, sf))
    if OFFL:
        q.e("s_add_u32 %s, %s, s9" % (sP2, sc_)); q.e("buffer_store_dword a112, v127, %s, %s offen sc1" % (sWS, sP2))
        q.e("s_add_u32 %s, %s, s9" % (sP2, sf)); q.e("buffer_store_dword a128, v127, %s, %s offen sc1" % (sWS, sP2))
    q.e("s_mov_b32 exec_hi, -1")
    items.append(Item(q.ins))
    return items

def wf_flag(p):
    lw = L()
    p.e("s_cmp_lg_u32 %s, 3" % sW); p.e("s_cbranch_scc1 %s" % lw)
    p.maybe = "w3"
    p.e("s_lshl_b32 %s, %s, 11" % (sT[0], sM)); p.e("s_lshl_b32 %s, %s, 7" % (sT[1], sC))
    p.e("s_add_u32 %s, %s, %s" % (sT[0], sT[0], sT[1])); p.e("s_add_u32 %s, %s, %d" % (sT[0], sT[0], OFF_WF2))
    flag_store(p, sT[0], sEg, True)
    p.maybe = False
    p.e("%s:" % lw)

def wf_poll(p):
    lw = L()
    p.e("s_cmp_lg_u32 %s, 3" % sW); p.e("s_cbranch_scc1 %s" % lw)
    p.maybe = "w3"
    p.e("v_mul_u32_u24 v30, 7, %s" % vG); p.e("v_add_u32 v30, %s, v30" % sCB); p.e("v_mov_b32 v31, %s" % sCB)
    p.e("v_cmp_gt_u32 vcc, 16, v30"); p.e("v_cndmask_b32 v30, v31, v30, vcc")
    p.e("v_lshlrev_b32 v30, 11, v30"); p.e("v_lshl_add_u32 v31, %s, 7, v30" % vL15)
    p.e("s_mov_b32 %s, %d" % (sT[0], OFF_WF2))
    poll(p, sT[0], sEg, "v31")
    p.maybe = False
    p.e("%s:" % lw)

def halo_dma0(bg):
    p = Prog(); n0 = 0
    p.e("s_lshl_b32 %s, %s, 7" % (sD0, sC))
    p.e("s_sub_u32 %s, %s, 16" % (sD1, sD0)); p.e("s_mul_i32 %s, %s, 896" % (sD1, sD1))
    halo_s0(p, sD2); p.e("s_lshl_b32 %s, %s, 6" % (sA1, sD2)); p.e("s_add_u32 %s, %s, %s" % (sD1, sD1, sA1))
    p.e("s_cmp_eq_u32 %s, 0" % sC); p.e("s_cselect_b32 %s, 0x40000000, %s" % (sD1, sD1))
    p.e("s_lshl_b32 %s, %s, 10" % (sD2, sD2))
    p.e("v_mul_u32_u24 v123, 896, %s" % vL15); p.e("v_lshl_add_u32 v123, %s, 4, v123" % vG)
    for u in range(4):
        p.e("s_add_u32 m0, %s, %d" % (sD2, L_HXP[0] + u * 1024 - u * 64))
        p.e("buffer_load_dwordx4 v123, %s, %s offen offset:%d lds" % (sX, sD1, u * 64))
    p.e("s_lshl_b32 %s, %s, 6" % (sD1, sTH)); p.e("s_add_u32 %s, %s, %s" % (sD1, sD1, sD0))
    p.e("s_lshl_b32 %s, %s, 4" % (sD2, sW)); p.e("s_add_u32 %s, %s, %s" % (sD1, sD1, sD2))
    p.e("s_mul_i32 %s, %s, 896" % (sD1, sD1)); p.e("s_lshl_b32 %s, %s, 7" % (sD2, sCB)); p.e("s_add_u32 %s, %s, %s" % (sD1, sD1, sD2))
    p.e("s_lshl_b32 %s, %s, 11" % (sA1, sW))
    for rb in range(2):
        if rb: p.e("s_add_u32 %s, %s, 7168" % (sD1, sD1))
        p.e("s_add_u32 m0, %s, %d" % (sA1, L_RES + rb * 1024))
        p.e("buffer_load_dwordx4 v25, %s, %s offen lds" % (sX, sD1))
    cur = Item()
    for i in p.ins:
        cur.append(i)
        if i.tok: bg.append(cur); cur = Item()
    return [i.tok for i in p.ins if i.tok]

def halo_finish0(p, hd):
    HQ = 80
    halo_s0(p, sT[0]); p.e("s_lshl_b32 %s, %s, 10" % (sT[0], sT[0])); p.e("s_add_u32 %s, %s, %d" % (sT[0], sT[0], L_HXP[0]))
    p.e("v_add_u32 v26, %s, %s" % (sT[0], vL0))
    p.e("v_lshrrev_b32 v27, 1, %s" % vG)
    p.e("v_and_b32 v28, 7, %s" % vLane); p.e("v_xor_b32 v27, v27, v28")
    p.e("v_lshlrev_b32 v27, 4, v27")
    p.e("v_lshl_add_u32 v27, %s, 7, v27" % vL15)
    p.e("v_and_b32 v28, 1, %s" % vG)
    p.e("v_lshl_add_u32 v27, v28, 3, v27")
    p.e("s_lshl_b32 %s, %s, 11" % (sT[3], sW)); p.e("s_add_u32 %s, %s, %d" % (sT[3], sT[3], L_RES))
    p.e("v_add_u32 v27, %s, v27" % sT[3])
    for t in range(1, 4): p.e("v_xor_b32 v%d, %d, v27" % (27 + t, 32 * t))
    p.e("v_lshlrev_b32 %s, 11, %s" % (vStat, vG))
    p.e("v_lshl_add_u32 %s, %s, 3, %s" % (vStat, vL15, vStat))
    p.wait(hd)
    rd = [p.e("ds_read_b128 %s, v26 offset:%d" % (V(HQ + 4 * u, 4), u * 1024)) for u in range(4)]
    rd += [p.e("ds_read_b64 %s, v%d" % (V(RES + 2 * t, 2), 27 + t)) for t in range(4)]
    p.e("s_cmp_eq_u32 %s, 3" % sW); p.e("s_cselect_b64 vcc, -1, 0")
    p.wait(rd)
    for i in range(8): p.e("v_cndmask_b32_e64 v%d, v%d, 0, vcc" % (HQ + i, HQ + i))
    for i in range(16):
        p.e("v_dot2_f32_bf16 v100, v%d, v%d, %s" % (HQ + i, vOnes, "0" if i == 0 else "v100"))
        p.e("v_dot2_f32_bf16 v101, v%d, v%d, %s" % (HQ + i, HQ + i, "0" if i == 0 else "v101"))
    xgroup_reduce(p, ["v100", "v101"], "v_add_f32", ["v106", "v107"])
    p.e("s_lshl_b32 %s, %s, 7" % (sT[0], sW)); p.e("s_add_u32 %s, %s, %d" % (sT[0], sT[0], L_HSP))
    p.e("v_lshl_add_u32 v26, %s, 3, %s" % (vL15, sT[0]))
    t = p.e("ds_write_b64 v26, v[100:101]")
    return t

def sT896(p):
    p.e("s_movk_i32 %s, 896" % sT[2]); return sT[2]
def halo_s0(p, dst):
    p.e("s_lshl_b32 %s, %s, 2" % (dst, sW))
    p.e("s_min_u32 %s, %s, 10" % (dst, dst))

def pretouch_o(p, pr):
    if not OPT["pretouch"]: return
    p.e("v_and_b32 v26, 7, %s" % vLane); p.e("v_lshlrev_b32 v26, 7, v26")
    p.e("v_bfe_u32 v27, %s, 3, 1" % vLane); p.e("v_lshl_add_u32 v26, v27, 14, v26")
    p.e("s_lshl_b32 %s, %s, 15" % (sT[0], sW)); p.e("s_lshl_b32 %s, %s, 10" % (sT[1], sM))
    p.e("s_add_u32 %s, %s, %s" % (sT[0], sT[0], sT[1])); p.e("s_add_u32 %s, %s, %s" % (sT[0], sT[0], sCl17))
    p.e("s_add_u32 %s, %s, %d" % (sT[0], sT[0], OFF_O[pr]))
    p.e("s_mov_b64 exec, 0xffff")
    p.e("buffer_load_dword %s, v26, %s, %s offen sc1" % (vJunk, sWS, sT[0]))
    p.e("s_mov_b64 exec, -1")

def xtile_base(p, dst, off):
    p.e("s_lshl_b32 %s, %s, 2" % (dst, sTH)); p.e("s_add_u32 %s, %s, %s" % (dst, dst, sW))
    p.e("s_mul_i32 %s, %s, 14336" % (dst, dst))
    p.e("s_lshl_b32 %s, %s, 11" % (sT[5], sCB)); p.e("s_add_u32 %s, %s, %s" % (dst, dst, sT[5]))
    p.e("s_add_u32 %s, %s, %s" % (dst, dst, sCl17)); p.e("s_add_u32 %s, %s, %d" % (dst, dst, off))
def xstat_base(p, dst, off):
    p.e("s_lshl_b32 %s, %s, 2" % (dst, sTH)); p.e("s_add_u32 %s, %s, %s" % (dst, dst, sW))
    p.e("s_lshl_b32 %s, %s, 7" % (dst, dst))
    p.e("s_lshl_b32 %s, %s, 10" % (sT[5], sCB)); p.e("s_add_u32 %s, %s, %s" % (dst, dst, sT[5]))
    p.e("s_add_u32 %s, %s, %s" % (dst, dst, sCl17)); p.e("s_add_u32 %s, %s, %d" % (dst, dst, off + XST))

def pretouch_x(p, off):
    if not OPT["pretouch"]: return
    xtile_base(p, sT[0], off); xstat_base(p, sT[1], off)
    p.e("v_lshlrev_b32 v26, 7, %s" % vLane)
    p.e("s_mov_b64 exec, 0xffff")
    p.e("buffer_load_dword %s, v26, %s, %s offen sc1" % (vJunk, sWS, sT[0]))
    p.e("s_mov_b64 exec, 1")
    p.e("buffer_load_dword %s, v26, %s, %s offen sc1" % (vJunk, sWS, sT[1]))
    p.e("s_mov_b64 exec, -1")

def pretouch_h(p, pr):
    if not OPT["pretouch"]: return
    p.e("v_and_b32 v26, 31, %s" % vLane); p.e("v_min_u32 v26, 27, v26"); p.e("v_lshlrev_b32 v26, 7, v26")
    p.e("v_lshrrev_b32 v27, 5, %s" % vLane)
    p.e("s_mov_b32 %s, 57344" % sT[1])
    p.e("v_mad_u32_u24 v26, v27, %s, v26" % sT[1])
    h_base(p, sT[0], pr)
    p.e("buffer_load_dword %s, v26, %s, %s offen sc1" % (vJunk, sWS, sT[0]))
def h_base(p, dst, pr):
    p.e("s_mul_i32 %s, %s, 114688" % (dst, sW)); p.e("s_mul_i32 %s, %s, 3584" % (sT[5], sM))
    p.e("s_add_u32 %s, %s, %s" % (dst, dst, sT[5])); p.e("s_add_u32 %s, %s, %s" % (dst, dst, sCl19))
    p.e("s_add_u32 %s, %s, %d" % (dst, dst, OFF_H[pr]))

def pretouch_lin(p):
    p.e("s_cmp_eq_u32 %s, 11" % sM); p.e("s_cselect_b32 %s, 7, %s" % (sP0, sM))
    p.e("s_lshl2_add_u32 %s, %s, %s" % (sP1, sP0, sW)); p.e("s_and_b32 %s, %s, 15" % (sP2, sP1)); p.e("s_lshl_b32 %s, %s, 13" % (sP2, sP2))
    p.e("s_lshr_b32 %s, %s, 4" % (sP1, sP1)); p.e("s_mul_i32 %s, %s, %d" % (sP1, sP1, OFF_X1[0] - OFF_O[0]))
    p.e("s_add_u32 %s, %s, %s" % (sP1, sP1, sP2)); p.e("s_add_u32 %s, %s, %s" % (sP1, sP1, sCl17)); p.e("s_add_u32 %s, %s, %d" % (sP1, sP1, OFF_O[0]))
    p.e("s_cmp_eq_u32 %s, 7" % sM); p.e("s_cselect_b32 %s, 9, %s" % (sP0, sP0))
    p.e("s_cmp_ge_u32 %s, 8" % sP0); p.e("s_cselect_b32 %s, 0x40000000, %s" % (sP1, sP1))
    p.e("v_lshlrev_b32 v30, 7, %s" % vLane)
    p.e("buffer_load_dword %s, v30, %s, %s offen sc1" % (vJunk, sWS, sP1))

def code_touch(p):
    lb = L("Lc")
    p.e("s_getpc_b64 s[92:93]")
    p.e("%s:" % lb)
    p.e("s_sub_u32 s92, s92, %s-Lpc" % lb); p.e("s_subb_u32 s93, s93, 0")
    p.e("s_and_b32 %s, %s, 1" % (sP0, sC)); p.e("s_lshl_b32 %s, %s, 4" % (sP0, sP0)); p.e("s_add_u32 %s, %s, %s" % (sP0, sP0, sM))
    p.e("s_mul_i32 %s, %s, CODE_NL" % (sP0, sP0))
    p.e("v_min_u32 v30, CODE_NL-1, %s" % vLane); p.e("v_add_u32 v30, %s, v30" % sP0); p.e("v_lshlrev_b32 v30, 7, v30")
    p.e("v_min_u32 v30, Lcode_end-Lpc-4, v30")
    p.e("global_load_dword %s, v30, s[92:93]" % vJunk)

def pretouch_flags(p):
    if not OPT["pretouch"]: return
    p.e("v_lshlrev_b32 v26, 15, %s" % vLane)
    p.e("s_lshl_b32 %s, %s, 11" % (sT[0], sC)); p.e("s_lshl_b32 %s, %s, 7" % (sT[1], sM))
    p.e("s_add_u32 %s, %s, %s" % (sT[0], sT[0], sT[1])); p.e("s_add_u32 %s, %s, %d" % (sT[0], sT[0], OFF_FLAG))
    p.e("s_mov_b64 exec, 0x7f")
    p.e("buffer_load_dword %s, v26, %s, %s offen sc1" % (vJunk, sWS, sT[0]))
    p.e("s_mov_b64 exec, -1")

exec(open(__file__.replace("gen.py", "phases.py")).read())

def build():
    p = Prog()
    st = {}
    st['wq'], st['dots1'], st['role'] = startup(p)
    seq = [("p1", 0), ("p2", 0), ("p3", 0), ("p4", 0), ("p1", 1), ("p2", 1), ("p3", 1), ("p4", 1)]
    for n, (ph, pr) in enumerate(seq):
        globals()[ph](p, pr, st)
        if n + 1 >= OPT["stop"]: break
    le, l2 = L(), L()
    p.e("Lfin:")
    if OPT["stamps"] or OPT["stop"] < 8: p.waitall()
    stamp(p, "end"); stamp(p, "R1")
    if OPT["stamps"]:
        p.e("v_lshlrev_b32 v30, 2, %s" % vLane)
        p.e("buffer_store_dword v0, v30, %s, %s offen" % (sWS, sStN))
        p.e("buffer_store_dword v24, v30, %s, %s offen offset:256" % (sWS, sStN))
    if OPT["stop"] < 8:
        p.maybe = "end"; epoch_update(p); p.maybe = False
    p.e("Lend:")
    p.e("s_endpgm")
    p.add(TAILCODE)
    p.e("Lcode_end:")
    return p

def main():
    p = build()
    ins, nn = finalize(p)
    if OPT.get('align', 1):
        import align
        print('align (promoted, still misaligned):', align.align(ins, '.set CODE_NL, 14'))
    n_i = sum(1 for i in ins if i.kind not in ("label", "dir"))
    est = n_i * 7
    hdr = open("cdna_kernels/%s.s.ref" % NAME).read().split("; Override launch")[0]
    out = [hdr.rstrip(), "; Persistent fused kernel, emitted by my own python generator (straight-line, statically scheduled).",
           "; 256 workgroups = 16 clusters (128 tokens each) x 16 members; per layer pair four phases with cluster hand-offs:",
           ";   P1 LN+QKV GEMM+sliding attention (member = head)   P2 Wo GEMM + residual (64x64 tiles)",
           ";   P3 LN+W1/W3 GEMM+SiLU*up (member = 112 hidden)     P4 W2 GEMM (K split over waves) + residual",
           "; LayerNorm is applied as rstd*(x@W - mean*colsum(W)); weights are re-laid out once per launch into d_ws.",
           "; Hand-offs use epoch-tagged flags in d_ws; members exchange XCC ids at run time and fall back to",
           "; agent-scope release/acquire when a cluster is not on one XCD.",
           "; @launch grid=(256,1,1) block=(256,1,1) lds=%d" % LDS_BYTES,
           '.amdgcn_target "amdgcn-amd-amdhsa--gfx950"', ".text", ".globl %s_kernel" % NAME, ".p2align 8",
           ".type %s_kernel,@function" % NAME, ".set CODE_NL, %d" % min(64, (n_i * 8 // 128) // 32 + 1), "%s_kernel:" % NAME]
    out += [i.text for i in ins]
    out += ['.section .rodata,"a"', ".p2align 6", ".amdhsa_kernel %s_kernel" % NAME,
            "  .amdhsa_next_free_vgpr 512", "  .amdhsa_next_free_sgpr 102", "  .amdhsa_accum_offset 256",
            "  .amdhsa_group_segment_fixed_size 0", "  .amdhsa_kernarg_size 80", "  .amdhsa_user_sgpr_count 2",
            "  .amdhsa_user_sgpr_kernarg_segment_ptr 1", "  .amdhsa_system_sgpr_workgroup_id_x 1",
            "  .amdhsa_float_denorm_mode_32 3", ".end_amdhsa_kernel", ""]
    open(sys.argv[1], "w").write("\n".join(out))
    open(sys.argv[1] + ".stamps", "w").write("\n".join(STAMPS))
    print("instructions: %d, hazard nops: %d forced bg: %d" % (n_i, nn, FORCED[0]))
main()
```

```python
import re

TRANS = ("v_exp_f32", "v_log_f32", "v_rcp_f32", "v_rsq_f32", "v_sqrt_f32", "v_sin_f32", "v_cos_f32")

def regs_of(tok):
    t = tok.strip()
    t = t.lstrip("-").strip("|")
    m = re.fullmatch(r"([vas])(\d+)", t)
    if m: return [(m.group(1), int(m.group(2)))]
    m = re.fullmatch(r"([vas])\[(\d+):(\d+)\]", t)
    if m: return [(m.group(1), i) for i in range(int(m.group(2)), int(m.group(3)) + 1)]
    if t == "vcc": return [("s", 106), ("s", 107)]
    if t == "exec": return [("s", 126), ("s", 127)]
    if t == "m0": return [("s", 124)]
    return []

class Ins:
    __slots__ = ("text", "op", "kind", "defs", "uses", "tok", "cnt", "waits", "maybe", "label", "target", "cost",
                 "srcc", "passes", "storedata", "known_done", "glue")
    VM_COST = 1
    def __init__(self, text):
        self.text = text; self.tok = None; self.cnt = None; self.waits = None; self.maybe = False
        self.label = None; self.target = None; self.srcc = []; self.passes = 0; self.storedata = []
        self.known_done = None; self.glue = False
        self.parse()
    def parse(self):
        t = self.text.strip()
        self.defs = []; self.uses = []; self.cost = 1; self.kind = "other"
        if t.endswith(":"):
            self.op = "label"; self.kind = "label"; self.label = t[:-1]; self.cost = 0; return
        if t.startswith(".") or t.startswith(";") or t == "":
            self.op = "dir"; self.kind = "dir"; self.cost = 0; return
        parts = t.split(None, 1)
        op = parts[0]; self.op = op
        rest = parts[1] if len(parts) > 1 else ""
        ops = [o.strip() for o in re.split(r",(?![^\[]*\])", rest)] if rest else []
        if ops:
            ops[-1] = ops[-1].split()[0] if ops[-1].split() else ""
        R = [regs_of(o) for o in ops]
        base = re.sub(r"_e32$|_e64$|_dpp$|_sdwa$", "", op)
        if op.startswith("v_mfma"):
            self.kind = "mfma"; self.cost = 2
            self.defs = R[0]; self.uses = R[1] + R[2] + R[3]; self.srcc = R[3]
            self.passes = 8 if "32x32" in op else 4
        elif op.startswith("v_"):
            self.kind = "valu"
            if base in TRANS: self.kind = "trans"; self.cost = 2
            if base.startswith("v_permlane"):
                self.kind = "perm"; self.cost = 2
                self.defs = R[0] + R[1]; self.uses = R[0] + R[1]
            elif base.startswith("v_cmp"):
                self.defs = R[0]; self.uses = sum(R[1:], [])
            elif base == "v_writelane_b32":
                self.defs = []; self.uses = sum(R[1:], [])
            elif base in ("v_readfirstlane_b32", "v_readlane_b32"):
                self.kind = "rdlane"; self.defs = R[0]; self.uses = sum(R[1:], [])
            else:
                self.defs = R[0]; self.uses = sum(R[1:], [])
                if base in ("v_fmac_f32", "v_dot2c_f32_bf16"): self.uses += R[0]
                if base == "v_cndmask_b32" and len(ops) == 3: self.uses += regs_of("vcc")
                if base.startswith("v_dot2"): self.kind = "dot"
                if "dpp" in op or "row_" in t or "quad_perm" in t:
                    self.kind = "dpp"; self.uses += R[0]
        elif op.startswith("ds_"):
            self.kind = "ds"; self.cnt = "lg"
            if op.startswith("ds_read") or op.startswith("ds_bpermute") or op.startswith("ds_swizzle"):
                self.defs = R[0]; self.uses = sum(R[1:], [])
            else:
                self.uses = sum(R, [])
        elif op.startswith("buffer_") or op.startswith("global_"):
            self.kind = "vmem"; self.cnt = "vm"; self.cost = Ins.VM_COST
            words = t.replace(",", " ").split()
            if op in ("buffer_wbl2", "buffer_inv"):
                pass
            elif "lds" in words[1:] or op.startswith("global_load_lds"):
                self.kind = "dma"; self.uses = sum(R, []) + regs_of("m0")
            elif "load" in op:
                self.defs = R[0]; self.uses = sum(R[1:], [])
            else:
                self.uses = sum(R, [])
                if op.endswith("x4") or op.endswith("x3"):
                    self.storedata = R[0] if op.startswith("buffer_") else R[1]
        elif op.startswith("s_"):
            self.kind = "salu"
            if op == "s_nop":
                self.kind = "nop"; self.cost = int(ops[0], 0) + 1
            elif op in ("s_waitcnt", "s_barrier", "s_endpgm", "s_sleep", "s_setprio"):
                self.kind = "sopp"
            elif op.startswith("s_cbranch") or op == "s_branch":
                self.kind = "branch"; self.target = ops[0]
            elif op.startswith("s_cmp") or op.startswith("s_bitcmp"):
                self.uses = sum(R, [])
            elif op.startswith("s_load") or op == "s_memtime" or op == "s_memrealtime":
                self.kind = "smem"; self.cnt = "sm"; self.defs = R[0]; self.uses = sum(R[1:], [])
            else:
                self.defs = R[0]; self.uses = sum(R[1:], [])
                if "saveexec" in op: self.defs += regs_of("exec"); self.uses += regs_of("exec")

VALU_KINDS = ("valu", "trans", "perm", "rdlane", "dot", "dpp")

def required(E, X):
    need = 0
    ed = set(E.defs); xu = set(X.uses); xd = set(X.defs)
    if E.kind in VALU_KINDS:
        vd = {r for r in ed if r[0] in "va"}; sd = {r for r in ed if r[0] == "s"}
        if vd & xu:
            if X.kind == "mfma": need = max(need, 2)
            if X.kind in ("perm", "dpp"): need = max(need, 2)
            if X.kind == "rdlane": need = max(need, 1)
            if E.kind == "trans" and X.kind != "trans": need = max(need, 1)
        if E.kind == "dot" and (vd & (xu | xd)):
            same = X.kind == "dot" and X.op == E.op
            if same:
                srcab = set(X.uses[:2]) if len(X.uses) >= 2 else set()
                if vd & srcab: need = max(need, 3)
            else:
                need = max(need, 3)
        if sd & xu:
            if X.kind in VALU_KINDS: need = max(need, 4 if X.kind == "rdlane" else 2)
            if X.kind in ("vmem", "dma"): need = max(need, 5)
    if E.kind == "mfma":
        big = E.passes == 8
        if X.kind == "mfma":
            c = set(X.srcc); ab = xu - c if not (set(X.uses[:len(X.uses) - len(X.srcc)]) & c) else set(X.uses[:len(X.uses) - len(X.srcc)])
            if ed & ab: need = max(need, 12 if big else 8)
            if ed & c:
                if not (X.srcc == E.defs and X.passes == E.passes): need = max(need, 10 if big else 6)
            elif (ed & xd) and X.passes != E.passes: need = max(need, 12)
        elif X.kind in VALU_KINDS or X.kind in ("vmem", "dma", "ds"):
            if ed & (xu | xd): need = max(need, 12 if big else 8)
            if X.kind in VALU_KINDS and (set(E.srcc) & xd): need = max(need, 7 if big else 3)
    if E.kind == "salu" and ("s", 124) in ed and X.kind == "dma": need = max(need, 1)
    if E.storedata and (set(E.storedata) & xd):
        need = max(need, 2 if X.kind in VALU_KINDS else 1)
    return need

class Prog:
    _tok = [0]
    def __init__(self):
        self.ins = []
        self.maybe = False
    def e(self, text):
        out = None
        for line in text.split("\n"):
            line = line.strip()
            if not line: continue
            i = Ins(line)
            i.maybe = self.maybe
            if i.cnt:
                Prog._tok[0] += 1; i.tok = Prog._tok[0]
            self.ins.append(i); out = i
        return out.tok if out is not None else None
    def wait(self, *toks):
        flat = []
        def rec(x):
            if isinstance(x, (list, tuple)):
                for y in x: rec(y)
            elif x is not None: flat.append(x)
        rec(toks)
        i = Ins("s_waitcnt auto"); i.waits = flat; i.maybe = self.maybe
        self.ins.append(i)
    def waitall(self, vm=True, lg=True):
        s = " ".join(x for x, f in (("vmcnt(0)", vm), ("lgkmcnt(0)", lg)) if f)
        i = Ins("s_waitcnt " + s); i.known_done = (vm, lg); i.maybe = self.maybe
        self.ins.append(i)
    def add(self, other):
        self.ins.extend(other.ins if isinstance(other, Prog) else other)
    def cost(self):
        return sum(i.cost for i in self.ins)

FORCED = [0]
def interleave(bundles, side, cap, start=0, bg=None, gap=0, bgstart=0, maxn=999):
    out = []; side = list(side); k = 0; t = 0; tnext = 0
    for bi, b in enumerate(bundles):
        if bg:
            need = {t_ for i in b if i.waits for t_ in i.waits}
            while need and any(x.tok in need for it in bg for x in it):
                out.extend(bg.pop(0)); FORCED[0] += 1
        out.extend(b)
        nm = sum(1 for i in b if i.kind == "mfma")
        dur = sum(i.passes * 4 for i in b if i.kind == "mfma")
        used = sum(i.cost for i in b if i.kind != "mfma")
        room = cap * nm - used
        t += dur
        if bg and bi >= bgstart and t >= tnext and maxn > 0:
            maxn -= 1
            it = bg.pop(0); out.extend(it); room -= sum(i.cost for i in it); tnext = t + gap
        if bi >= start:
            while k < len(side) and (side[k].cost <= room or (side[k].glue and k > 0 and out[-1] is side[k - 1])):
                out.append(side[k]); room -= side[k].cost; k += 1
    return out, side[k:]

def glue_scc(ins):
    for i in ins:
        if i.op.startswith("s_cselect") or i.op.startswith("s_cbranch") or i.op.startswith("v_cndmask") or i.op.startswith("v_dot2"): i.glue = True
    return ins

def sprinkle(ins, bg, gap, maxn=99):
    out = []; t = 0; tnext = 0; n = 0
    for i in ins:
        if bg and n < maxn and t >= tnext and not i.maybe and i.kind not in ("label", "branch") and not (out and (out[-1].op.startswith("s_cmp") or out[-1].maybe or out[-1].op in ("s_add_u32", "s_sub_u32") and i.op.startswith("s_c"))):
            it = bg.pop(0); out.extend(it); tnext = t + gap; n += 1
        out.append(i); t += 4 * max(i.cost, 0)
    return out

def resolve_waits(ins):
    vm = []; lg = []
    done = set()
    out = []
    kind_of = {i.tok: i.cnt for i in ins if i.tok}
    for i in ins:
        if i.waits is not None:
            nv = nl = None
            def need(lst, toks):
                idx = [k for k, (t, mb) in enumerate(lst) if t in toks]
                if not idx: return None
                last = max(idx)
                return last, sum(1 for (t, mb) in lst[last + 1:] if (not mb) or (i.maybe and mb == i.maybe))
            toks = set(i.waits) - done
            for t in toks:
                assert t in kind_of, "wait on unknown token"
            issued = {t for t, _ in vm} | {t for t, _ in lg}
            assert toks <= issued, "wait on op not yet issued: %s" % (sorted(toks - issued),)
            a = need(vm, toks); b = need(lg, toks)
            parts = []
            if a is not None:
                n = min(a[1], 63); parts.append("vmcnt(%d)" % n)
                if not i.maybe:
                    done |= {t for t, _ in vm[:a[0] + 1]}; vm = vm[a[0] + 1:]
            if b is not None:
                n = min(b[1], 15)
                if any(kind_of[t] == "sm" for t, _ in lg): n = 0
                parts.append("lgkmcnt(%d)" % n)
                if not i.maybe:
                    cut = len(lg) if n == 0 and any(kind_of[t] == "sm" for t, _ in lg) else b[0] + 1
                    done |= {t for t, _ in lg[:cut]}; lg = lg[cut:]
            if parts:
                j = Ins("s_waitcnt " + " ".join(parts)); j.maybe = i.maybe; out.append(j)
            continue
        if i.known_done is not None and not i.maybe:
            if i.known_done[0]: done |= {t for t, _ in vm}; vm = []
            if i.known_done[1]: done |= {t for t, _ in lg}; lg = []
        if i.cnt == "vm": vm.append((i.tok, i.maybe))
        elif i.cnt in ("lg", "sm"): lg.append((i.tok, i.maybe))
        out.append(i)
    return out

def pad_hazards(ins, window=24):
    out = []; hist = []; pos = 0
    snaps = {}
    nins = 0
    for X in ins:
        if X.kind == "label":
            for (bp, h) in snaps.get(X.label, []):
                for (pe, E) in h:
                    hist.append((pos - (bp - pe), E))
            out.append(X); continue
        if X.kind == "dir":
            out.append(X); continue
        need = 0
        for (pe, E) in hist:
            d = pos - pe - 1
            r = required(E, X)
            if r > d: need = max(need, r - d)
        while need > 0:
            n = min(need, 16)
            out.append(Ins("s_nop %d" % (n - 1))); pos += n; need -= n; nins += 1
        out.append(X)
        st = X.cost if X.kind == "nop" else 1
        pos += st
        hist.append((pos - 1, X))
        hist = [(p, E) for (p, E) in hist if pos - p <= window]
        if X.kind == "branch":
            snaps.setdefault(X.target, []).append((pos, list(hist)))
    return out, nins

def finalize(prog):
    ins = resolve_waits(prog.ins)
    ins, n = pad_hazards(ins)
    return ins, n
```
